```python
import torch

def _softmax(x, axis=-1):
    return torch.softmax(x, dim=axis)
def _gelu(x):
    return torch.nn.functional.gelu(x, approximate="tanh")
def _silu(x):
    return torch.nn.functional.silu(x)
def _sigmoid(x):
    return torch.sigmoid(x)
def _layernorm(x, axis=-1, eps=1e-5):
    m = x.mean(dim=axis, keepdim=True)
    v = x.var(dim=axis, keepdim=True, unbiased=False)
    return (x - m) / torch.sqrt(v + eps)
def _scatter_add(tgt, idx, src, axis=0):
    return tgt.clone().index_add_(axis, idx, src)
def _segment_sum(src, seg, n):
    out = torch.zeros((n,) + src.shape[1:], dtype=src.dtype)
    return out.index_add_(0, seg, src)
def _pad(x, pw):
    flat = tuple(v for pair in reversed(pw) for v in pair)
    return torch.nn.functional.pad(x, flat)

kernel_name = 'interleave_layers__linear_kernel_hedgehog__linear_kernel_hedgehog__prompt'

def setup_inputs():

    _w = (lambda a: (lambda t: t.to(torch.bfloat16) if t.is_floating_point() else t)(torch.as_tensor(a)))
    def _A_setup():
        B, S, D, H = 1, 2048, 512, 32
        Dh = D // H
        return {
            "x": _w((lambda *s: torch.randn(*s, dtype=torch.bfloat16) * 0.1)(B, S, D)),
            "wqkv": _w((lambda *s: torch.randn(*s, dtype=torch.bfloat16) * 0.4)(D, 3 * D)),
            "w_phi": _w((lambda *s: torch.randn(*s, dtype=torch.bfloat16) * 0.4)(H, Dh, Dh) * (Dh ** -0.5)),
            "wo": _w((lambda *s: torch.randn(*s, dtype=torch.bfloat16) * 0.1)(D, D)),
        }
    _A_in = _A_setup()

    def _B_setup():
        B, S, D, H = 1, 2048, 512, 32
        Dh = D // H
        return {
            "x": _w((lambda *s: torch.randn(*s, dtype=torch.bfloat16) * 0.1)(B, S, D)),
            "wqkv": _w((lambda *s: torch.randn(*s, dtype=torch.bfloat16) * 0.8)(D, 3 * D)),
            "w_phi": _w((lambda *s: torch.randn(*s, dtype=torch.bfloat16) * 0.8)(H, Dh, Dh) * (Dh ** -0.5)),
            "wo": _w((lambda *s: torch.randn(*s, dtype=torch.bfloat16) * 0.1)(D, D)),
        }
    _B_in = _B_setup()

    return {
        "A_x": _A_in["x"],
        "A_wqkv": _A_in["wqkv"],
        "A_w_phi": _A_in["w_phi"],
        "A_wo": _A_in["wo"],
        "B_x": _B_in["x"],
        "B_wqkv": _B_in["wqkv"],
        "B_w_phi": _B_in["w_phi"],
        "B_wo": _B_in["wo"],
    }

def reference(A_x, A_wqkv, A_w_phi, A_wo, B_x, B_wqkv, B_w_phi, B_wo):
    def _A_ref(x, wqkv, w_phi, wo):
        B, S, D = x.shape
        H = 32; Dh = D // H
        qkv = (lambda x, *d: x.permute(*d))((x @ wqkv).reshape(B, S, 3, H, Dh), 2, 0, 3, 1, 4)
        q, k, v = qkv[0], qkv[1], qkv[2]
        pq = torch.einsum("bhsd,hdf->bhsf", q, w_phi)
        pk = torch.einsum("bhsd,hdf->bhsf", k, w_phi)
        phi_q = torch.concatenate([_softmax(pq, axis=-1), _softmax(-pq, axis=-1)], axis=-1)
        phi_k = torch.concatenate([_softmax(pk, axis=-1), _softmax(-pk, axis=-1)], axis=-1)
        kv = torch.einsum("bhsf,bhsd->bhfd", phi_k, v)
        z  = torch.einsum("bhsf->bhf", phi_k)
        num = torch.einsum("bhqf,bhfd->bhqd", phi_q, kv)
        den = torch.einsum("bhqf,bhf->bhq", phi_q, z)[..., None] + 1e-6
        o = num / den
        return (lambda x, *d: x.permute(*d))(o, 0, 2, 1, 3).reshape(B, S, D) @ wo

    def _B_ref(x, wqkv, w_phi, wo):
        B, S, D = x.shape
        H = 32; Dh = D // H
        qkv = (lambda x, *d: x.permute(*d))((x @ wqkv).reshape(B, S, 3, H, Dh), 2, 0, 3, 1, 4)
        q, k, v = qkv[0], qkv[1], qkv[2]
        pq = torch.einsum("bhsd,hdf->bhsf", q, w_phi)
        pk = torch.einsum("bhsd,hdf->bhsf", k, w_phi)
        phi_q = torch.concatenate([_softmax(pq, axis=-1), _softmax(-pq, axis=-1)], axis=-1)
        phi_k = torch.concatenate([_softmax(pk, axis=-1), _softmax(-pk, axis=-1)], axis=-1)
        kv = torch.einsum("bhsf,bhsd->bhfd", phi_k, v)
        z  = torch.einsum("bhsf->bhf", phi_k)
        num = torch.einsum("bhqf,bhfd->bhqd", phi_q, kv)
        den = torch.einsum("bhqf,bhf->bhq", phi_q, z)[..., None] + 1e-6
        o = num / den
        return (lambda x, *d: x.permute(*d))(o, 0, 2, 1, 3).reshape(B, S, D) @ wo

    x = A_x
    x = x + _A_ref(_layernorm(x, axis=-1), A_wqkv, A_w_phi, A_wo)
    x = x + _B_ref(_layernorm(x, axis=-1), B_wqkv, B_w_phi, B_wo)
    x = x + _A_ref(_layernorm(x, axis=-1), A_wqkv, A_w_phi, A_wo)
    x = x + _B_ref(_layernorm(x, axis=-1), B_wqkv, B_w_phi, B_wo)
    return x
```

```python
import re

TRANS = ("v_exp_", "v_log_", "v_rcp_", "v_rsq_", "v_sqrt_", "v_sin_", "v_cos_")


def regs_of(op):
    op = op.strip()
    op = op.lstrip("-")
    m = re.fullmatch(r"abs\((.*)\)", op)
    if m:
        op = m.group(1)
    m = re.fullmatch(r"\|(.*)\|", op)
    if m:
        op = m.group(1)
    m = re.fullmatch(r"([vas])(\d+)", op)
    if m:
        return {(m.group(1), int(m.group(2)))}
    m = re.fullmatch(r"([vas])\[(\d+):(\d+)\]", op)
    if m:
        return {(m.group(1), i) for i in range(int(m.group(2)), int(m.group(3)) + 1)}
    if op in ("vcc", "vcc_lo", "vcc_hi"):
        return {("s", "vcc")}
    if op in ("exec", "exec_lo", "exec_hi"):
        return {("s", "exec")}
    if op == "m0":
        return {("s", "m0")}
    return set()


class Ins:
    def __init__(self, text):
        self.text = text
        t = text.split(";")[0].strip()
        self.label = None
        self.mn = None
        self.ops = []
        self.mods = ""
        self.w = set()
        self.r = set()
        if not t or t.startswith("."):
            if t.endswith(":"):
                self.label = t[:-1]
            return
        if t.endswith(":"):
            self.label = t[:-1]
            return
        parts = t.split(None, 1)
        self.mn = parts[0]
        rest = parts[1] if len(parts) > 1 else ""
        ops, cur, depth = [], "", 0
        for ch in rest:
            if ch in "[(":
                depth += 1
            if ch in "])":
                depth -= 1
            if ch == "," and depth == 0:
                ops.append(cur.strip())
                cur = ""
            else:
                cur += ch
        if cur.strip():
            ops.append(cur.strip())
        if ops:
            last = ops[-1].split(None, 1)
            ops[-1] = last[0]
            self.mods = last[1] if len(last) > 1 else ""
        self.ops = ops
        self.classify()

    def classify(self):
        mn, ops = self.mn, self.ops
        R = [regs_of(o) for o in ops]
        self.is_mfma = mn.startswith("v_mfma")
        self.is_valu = mn.startswith("v_") and not self.is_mfma
        self.is_trans = mn.startswith(TRANS)
        self.is_vmem = mn.startswith(("buffer_", "global_", "flat_"))
        self.is_ds = mn.startswith("ds_")
        self.is_salu = mn.startswith("s_")
        self.is_dpp = "quad_perm" in self.mods or "row_" in self.mods or "_dpp" in mn
        self.is_permlane = mn.startswith("v_permlane")
        self.is_branch = mn.startswith(("s_branch", "s_cbranch"))
        self.is_lds_dma = self.is_vmem and (" lds" in " " + self.mods or "_lds_" in mn)
        self.passes = 0
        self.sA = self.sB = self.sC = set()
        self.store_data = set()
        if self.is_mfma:
            self.passes = 8 if "32x32" in mn else 4
            self.w = R[0]
            self.sA, self.sB, self.sC = R[1], R[2], R[3]
            self.r = R[1] | R[2] | R[3]
        elif self.is_valu:
            if self.is_permlane:
                self.w = R[0] | R[1]
                self.r = R[0] | R[1]
            elif mn.startswith("v_nop"):
                pass
            else:
                self.w = set(R[0])
                self.r = set().union(*R[1:]) if len(R) > 1 else set()
                if mn.startswith(("v_add_co", "v_sub_co", "v_addc_co", "v_subb_co")):
                    self.w |= R[1]
                    self.r = set().union(*R[2:])
                if mn.startswith(("v_fmac", "v_dot2c", "v_writelane", "v_pk_fmac")) or self.is_dpp:
                    self.r |= R[0]
                if mn.startswith("v_cmpx"):
                    self.w |= {("s", "exec")}
        elif self.is_ds:
            if mn.startswith(("ds_read", "ds_bpermute", "ds_permute", "ds_swizzle")):
                self.w = R[0]
                self.r = set().union(*R[1:])
            else:
                self.r = set().union(*R)
        elif self.is_vmem:
            if mn.startswith(("buffer_wbl2", "buffer_inv")):
                pass
            elif self.is_lds_dma:
                self.r = set().union(*R) | {("s", "m0")}
            elif "_load_" in mn:
                self.w = R[0]
                self.r = set().union(*R[1:])
            elif mn.startswith("buffer_"):
                self.r = set().union(*R)
                if mn.endswith(("x3", "x4")):
                    self.store_data = R[0]
                if "atomic" in mn and "sc0" in self.mods:
                    self.w = R[0]
            else:
                self.r = set().union(*R)
                if mn.endswith(("x3", "x4")):
                    self.store_data = R[1]
        elif self.is_salu:
            if mn.startswith(("s_cmp", "s_bitcmp", "s_waitcnt", "s_nop", "s_barrier", "s_branch", "s_cbranch",
                              "s_endpgm", "s_setprio", "s_sleep", "s_setreg")):
                self.r = set().union(*R) if R else set()
            else:
                self.w = set(R[0]) if R else set()
                self.r = set().union(*R[1:]) if len(R) > 1 else set()
                if "saveexec" in mn:
                    self.w |= {("s", "exec")}

    def states(self):
        if self.mn is None:
            return 0
        if self.mn == "s_nop":
            return int(self.ops[0], 0) + 1
        return 1


def vec(regs):
    return {x for x in regs if x[0] in "va"}


def sca(regs):
    return {x for x in regs if x[0] == "s"}


def need(p, c):
    n = 0
    if p.is_valu:
        pv, ps = vec(p.w), sca(p.w)
        if c.is_mfma and pv & c.r:
            n = max(n, 2)
        if c.is_valu:
            if c.is_permlane and pv & c.r:
                n = max(n, 2)
            if c.is_dpp and pv & c.r:
                n = max(n, 2)
            if c.mn.startswith(("v_readlane", "v_readfirstlane")) and pv & c.r:
                n = max(n, 1)
            if p.is_trans and not c.is_trans and pv & c.r:
                n = max(n, 1)
            if ps & c.r:
                n = max(n, 4 if c.mn.startswith(("v_readlane", "v_writelane")) else 2)
            if ("s", "exec") in ps:
                n = max(n, 5 if c.is_dpp else 4 if (c.is_permlane or c.mn.startswith(("v_readlane", "v_readfirstlane", "v_writelane"))) else 0)
            if ("op_sel" in p.mods and not p.mn.startswith("v_pk_")) and pv & (c.r | c.w):
                n = max(n, 1)
        if p.is_trans and (c.is_vmem or c.is_ds) and pv & c.r:
            n = max(n, 1)
        if c.is_vmem and ps & c.r:
            n = max(n, 5)
        if c.is_mfma and ("s", "exec") in ps:
            n = max(n, 4)
        if p.mn.startswith("v_dot") and (c.is_valu or c.is_mfma or c.is_vmem or c.is_ds) and pv & (c.r | c.w):
            if not (c.mn == p.mn and not (pv & (regs_of(c.ops[1]) | regs_of(c.ops[2])))):
                n = max(n, 3)
    if p.is_mfma:
        full = {4: 8, 8: 12}[p.passes]
        if c.is_mfma:
            if p.w & (c.sA | c.sB):
                n = max(n, full)
            if p.w & c.sC:
                if not (p.w == c.sC and p.passes == c.passes):
                    n = max(n, {4: 6, 8: 10}[p.passes])
            elif p.w & c.w:
                n = max(n, {4: 6, 8: 10}[p.passes])
        elif c.is_valu or c.is_vmem or c.is_ds:
            if p.w & (c.r | c.w):
                n = max(n, full)
            if c.is_valu and p.sC & c.w:
                n = max(n, {4: 3, 8: 7}[p.passes])
    if p.is_vmem and p.store_data and (c.is_valu or c.is_mfma or c.is_ds or c.is_vmem) and p.store_data & c.w:
        n = max(n, 2)
    if p.is_salu and ("s", "m0") in p.w and c.is_lds_dma:
        n = max(n, 1)
    return n


class Asm:
    def __init__(self):
        self.out = []
        self.vmq = []
        self.lgq = []
        self.nlabel = 0

    def __call__(self, text):
        for line in text.split("\n"):
            line = line.strip()
            if line:
                self.out.append(Ins(line))

    def c(self, text):
        self.out.append(Ins("; " + text))

    def label(self, base="L"):
        self.nlabel += 1
        return f"{base}_{self.nlabel}"

    def vm(self, text, tag=None):
        self(text)
        self.vmq.append(tag)

    def ds(self, text, tag=None):
        self(text)
        self.lgq.append(tag)

    def _count(self, q, tag):
        idx = max(i for i, t in enumerate(q) if t == tag)
        return len(q) - 1 - idx, idx

    def wait(self, vm=None, lg=None):
        parts = []
        if vm is not None:
            if vm == 0:
                parts.append("vmcnt(0)")
                self.vmq = []
            elif vm in self.vmq:
                n, idx = self._count(self.vmq, vm)
                assert n <= 63, n
                parts.append(f"vmcnt({n})")
                self.vmq = self.vmq[idx + 1:]
        if lg is not None:
            if lg == 0:
                parts.append("lgkmcnt(0)")
                self.lgq = []
            elif lg in self.lgq:
                n, idx = self._count(self.lgq, lg)
                n = min(n, 15)
                parts.append(f"lgkmcnt({n})")
                self.lgq = self.lgq[len(self.lgq) - n:] if n else []
        if parts:
            self("s_waitcnt " + " ".join(parts))

    def fix_hazards(self, verbose=False):
        res = []
        inserted = 0
        for ins in self.out:
            if ins.mn is not None:
                dist = 0
                req = 0
                for p in reversed(res):
                    if p.mn is None:
                        continue
                    k = need(p, ins) - dist
                    if k > req:
                        req = k
                        why = p
                    dist += p.states()
                    if dist > 20:
                        break
                if req > 0:
                    res.append(Ins(f"s_nop {req - 1}"))
                    inserted += req
                    if verbose:
                        print(f"nop {req}: {why.text}  ->  {ins.text}")
            res.append(ins)
        self.out = res
        labels = {ins.label: i for i, ins in enumerate(res) if ins.label}
        bad = 0
        for i, ins in enumerate(res):
            if ins.mn and ins.is_branch:
                tgt = labels.get(ins.ops[0])
                if tgt is None:
                    continue
                pre = [p for p in res[max(0, i - 40):i + 1] if p.mn]
                post = [p for p in res[tgt:tgt + 40] if p.mn]
                d0 = 0
                for cns in post:
                    dist = d0
                    for p in reversed(pre):
                        if need(p, cns) > dist:
                            print(f"BRANCH HAZARD via {ins.text}: {p.text} -> {cns.text}")
                            bad += 1
                        dist += p.states()
                        if dist > 20:
                            break
                    d0 += cns.states()
                    if d0 > 20 or cns.mn in ("s_branch", "s_endpgm"):
                        break
        assert bad == 0
        return inserted

    def text(self):
        lines = []
        for ins in self.out:
            if ins.label or ins.text.startswith("."):
                lines.append(ins.text)
            else:
                lines.append("    " + ins.text)
        return "\n".join(lines) + "\n"
```

```python
import sys
from asmlib import Asm

NAME = "interleave_layers__linear_kernel_hedgehog__linear_kernel_hedgehog__prompt"
STAMP = "--stamp" in sys.argv
NLAYERS = 4

WS_O = 0x000000
WS_WOT = 0x200000
WS_KV = 0x300000
KV_L = 2304
KV_R = 9216
KV_G = 16 * KV_R
WS_ST = 0x540000
WS_FL = 0x580000
WS_STAMP = 0x600000
WS_SIZE = 0x800000

L_WK = 0
L_WV = 32768
L_WQ = 65536
L_R = 98304
L_V = L_R + 16384
L_KV = 131072
KVROW = 80
KVH = 17 * KVROW
L_WPHI = 134144
L_ID = 138240
L_CS = 140288
L_SX = 146432
L_STG = 147456
L_END = 155648
SEG_OFF = {"k": 1024, "v": 2048, "q": 0}
SEG_LDS = {"k": L_WK, "v": L_WV, "q": L_WQ}
SEG_IDX = {"k": 0, "v": 1, "q": 2}

sWA, sWB, sWS, sOUT, sDBG, sX0, sT0, sT1 = 32, 36, 40, 44, 48, 52, 56, 60


def srd(n):
    return f"s[{n}:{n + 3}]"


sR, sG, sW, sFAST, sBUD, sXCC = 64, 65, 66, 67, 68, 69
sXin = 70
sOst = 71
sOld = 72
sXst = 73
sKVp = 74
sKVc = 75
sSTp = 76
sSTc = 77
sF2p, sF3p = 78, 79
sWdma = 80
sWlds = 81
sWOT = 82
sA, sB, sC, sD = 84, 85, 86, 87
sE, sF = 88, 89
sTM = 90
sEX = 92

vTID = 0
vL16, vOrd, vWtr, vWtrq, vWdma = 1, 2, 3, 4, 5
vPKw0, vPKw1, vVw, vPKr, vVr = 6, 7, 8, 9, 10
vKVst, vZst, vKVld, vZld, vKVw, vZw, vKVr = 11, 12, 13, 14, 15, 16, 17
vFl2, vFl3, vL4, vCst = 18, 19, 20, 21
vL4c = 22
vSTAMP = 23
RES = 24
ACC0 = 40
ACC1 = 56
RING = 72
P0, P1 = 72, 88
T = 104
XF = 128


def vr(b, n):
    return f"v[{b}:{b + n - 1}]"


def ar(b, n):
    return f"a[{b}:{b + n - 1}]"


a = Asm()
nstamp = [0]


def stamp(name):
    if not STAMP:
        return
    i = nstamp[0]
    nstamp[0] += 1
    assert i < 64
    a.wait(lg=0)
    a(f"s_memtime s[{sTM}:{sTM + 1}]")
    a("s_waitcnt lgkmcnt(0)")
    a(f"v_writelane_b32 v{vSTAMP}, s{sTM}, {i}")
    stamp_names.append(name)


stamp_names = []


def mk_srd(n, ptr, size):
    a(f"s_mov_b32 s{n}, s{ptr}")
    a(f"s_mov_b32 s{n + 1}, s{ptr + 1}")
    a(f"s_mov_b32 s{n + 2}, {hex(size)}")
    a(f"s_mov_b32 s{n + 3}, 0x20000")


def budget_check():
    a(f"s_sub_u32 s{sBUD}, s{sBUD}, 1")
    a("s_cbranch_scc1 L_end")


def dual_store(lines):
    l1, l2 = a.label("Lslow"), a.label("Ljoin")
    a(f"s_cmp_eq_u32 s{sFAST}, 0")
    a(f"s_cbranch_scc1 {l1}")
    for t in lines:
        a(t)
    a(f"s_branch {l2}")
    a(f"{l1}:")
    for t in lines:
        a(t + (" sc1" if t.startswith("buffer_") else ""))
    a(f"{l2}:")


def w_dma(Wsrd, seg, half):
    g = []
    for i in range(4):
        pre = []
        if i == 0:
            pre.append(f"s_add_u32 m0, s{sWlds}, {SEG_LDS[seg] + half * 16384}")
        pre.append(f"s_add_u32 s{sA}, s{sWdma}, {SEG_OFF[seg] + (half * 16 + i) * 49152 - i * 1024}")
        g.append((pre, f"buffer_load_dwordx4 v{vWdma}, {srd(Wsrd)}, s{sA} offen offset:{i * 1024} lds"))
    return g


def emit_dma(grp, tag):
    pre, ld = grp
    for t in pre:
        a(t)
    a.vm(ld, tag)


def w_read(seg, ks, slot, tag):
    base = vWtrq if seg == "q" else vWtr
    off = (SEG_LDS[seg] & 0xffff) + ks * 1024
    a.ds(f"ds_read_b64_tr_b16 {vr(slot, 2)}, v{base} offset:{off}", tag)
    a.ds(f"ds_read_b64_tr_b16 {vr(slot + 2, 2)}, v{base} offset:{off + 256}", tag)


def colsum(pairs, st, first_half_init):
    PAR = T + 12
    a(f"v_lshrrev_b32 v{PAR}, 2, v{vTID}")
    a(f"v_lshrrev_b32 v{PAR + 1}, 4, v{vTID}")
    a(f"v_xor_b32 v{PAR}, v{PAR}, v{PAR + 1}")
    a(f"v_and_b32 v{PAR}, 1, v{PAR}")
    a(f"v_subrev_u32 v{PAR}, 1, v{PAR}")
    a(f"v_and_b32 v{PAR}, 0x3f803f80, v{PAR}")
    for i in range(1, 4):
        a(f"v_mov_b32 v{PAR + i}, v{PAR}")
    a(f"v_add_u32 v{T + 16}, s{sWlds}, v{vWtr}")
    a(f"v_add_u32 v{T + 17}, s{sWlds}, v{vWtrq}")
    tiles = [(seg, half, i) for seg, half in pairs for i in range(4)]
    started = set()

    def rd(n):
        seg, half, i = tiles[n]
        base = T + 17 if seg == "q" else T + 16
        off = (SEG_LDS[seg] & 0xffff) + half * 16384 + i * 1024
        slot = RING + (n % 8) * 4
        a.ds(f"ds_read_b64_tr_b16 {vr(slot, 2)}, v{base} offset:{off}", f"cs{n}")
        a.ds(f"ds_read_b64_tr_b16 {vr(slot + 2, 2)}, v{base} offset:{off + 256}", f"cs{n}")
    for n in range(min(6, len(tiles))):
        rd(n)
    for n, (seg, half, i) in enumerate(tiles):
        a.wait(lg=f"cs{n}")
        acc = T + SEG_IDX[seg] * 4
        init = first_half_init and seg not in started
        started.add(seg)
        a(f"v_mfma_f32_16x16x32_bf16 {vr(acc, 4)}, {vr(PAR, 4)}, {vr(RING + (n % 8) * 4, 4)}, {'0' if init else vr(acc, 4)}")
        if n + 6 < len(tiles):
            rd(n + 6)


def colsum_write(segs, st):
    a(f"s_lshl_b32 s{sA}, s{sW}, 8")
    a(f"v_add_u32 v{T + 16}, s{sA}, v{vL4c}")
    for seg in segs:
        a.ds(f"ds_write_b32 v{T + 16}, v{T + SEG_IDX[seg] * 4} offset:{(st * 3 + SEG_IDX[seg]) * 1024}")


def cs_frag_read(seg, st, dst, tag):
    o = (st * 3 + SEG_IDX[seg]) * 4
    a.ds(f"ds_read2st64_b32 {vr(dst, 2)}, v{vL4c} offset0:{o} offset1:{o + 1}", tag)
    a.ds(f"ds_read2st64_b32 {vr(dst + 2, 2)}, v{vL4c} offset0:{o + 2} offset1:{o + 3}", tag)


def cs_frag_ops(dst):
    return [
        f"v_add_f32 v{dst}, v{dst}, v{dst + 1}",
        f"v_add_f32 v{dst + 2}, v{dst + 2}, v{dst + 3}",
        f"v_add_f32 v{dst + 2}, v{dst}, v{dst + 2}",
        f"v_cvt_pk_bf16_f32 v{dst}, v{dst + 2}, v{dst + 2}",
        f"v_and_b32 v{dst + 3}, 0xffff0000, v{dst}",
        f"v_sub_f32 v{dst + 3}, v{dst + 2}, v{dst + 3}",
        f"v_cvt_pk_bf16_f32 v{dst + 1}, v{dst + 3}, 0",
    ]


def stats_partial():
    s1, s2 = T, T + 2
    a(f"v_pk_add_f32 {vr(s1, 2)}, {vr(RES, 2)}, {vr(RES + 2, 2)}")
    a(f"v_pk_mul_f32 {vr(s2, 2)}, {vr(RES, 2)}, {vr(RES, 2)}")
    a(f"v_pk_fma_f32 {vr(s2, 2)}, {vr(RES + 2, 2)}, {vr(RES + 2, 2)}, {vr(s2, 2)}")
    for i in range(2, 8):
        x = vr(RES + 2 * i, 2)
        a(f"v_pk_add_f32 {vr(s1, 2)}, {vr(s1, 2)}, {x}")
        a(f"v_pk_fma_f32 {vr(s2, 2)}, {x}, {x}, {vr(s2, 2)}")
    a(f"v_add_f32 v{s1}, v{s1}, v{s1 + 1}")
    a(f"v_add_f32 v{s2}, v{s2}, v{s2 + 1}")
    a(f"s_lshl_b32 s{sA}, s{sW}, 8")
    a(f"v_add_u32 v{T + 4}, s{sA}, v{vL4c}")
    a(f"v_permlane32_swap_b32 v{s1}, v{s2}")
    a(f"v_add_f32 v{s1}, v{s1}, v{s2}")
    a.ds(f"ds_write_b32 v{T + 4}, v{s1} offset:{L_SX - L_CS}")


def stats_publish(layer, force_sc1):
    lab = a.label("Lst")
    a(f"s_cmp_lg_u32 s{sW}, 0")
    a(f"s_cbranch_scc1 {lab}")
    o = (L_SX - L_CS) // 256
    a(f"ds_read2st64_b32 {vr(T, 2)}, v{vL4c} offset0:{o} offset1:{o + 1}")
    a(f"ds_read2st64_b32 {vr(T + 2, 2)}, v{vL4c} offset0:{o + 2} offset1:{o + 3}")
    a("s_waitcnt lgkmcnt(0)")
    a(f"v_add_f32 v{T}, v{T}, v{T + 1}")
    a(f"v_add_f32 v{T + 2}, v{T + 2}, v{T + 3}")
    a(f"v_add_f32 v{T}, v{T}, v{T + 2}")
    st = f"buffer_store_dword v{T}, v{vL4}, {srd(sWS)}, s{sSTp} offen offset:{layer * 256}"
    if force_sc1:
        a(st + " sc1")
    else:
        dual_store([st])
    a(f"{lab}:")


ST = T + 8
MEANB = T + 12
SCL = T + 14
RSTD = T + 16
CSK, CSV = T, T + 4
WPH = T + 0
KP = T + 8


def stats_loads(layer):
    for c in range(4):
        a.vm(f"buffer_load_dword v{ST + c}, v{vL4}, {srd(sWS)}, s{sSTc} offen offset:{c * 1024 + layer * 256} sc1", "st")


def stats_check(layer):
    ok, again = a.label("Lstok"), a.label("Lstre")
    a(f"{again}:")
    a(f"v_max3_u32 v{RSTD}, v{ST}, v{ST + 1}, v{ST + 2}")
    a(f"v_max_u32 v{RSTD}, v{RSTD}, v{ST + 3}")
    a(f"v_cmp_eq_u32 vcc, -1, v{RSTD}")
    a(f"s_cbranch_vccz {ok}")
    budget_check()
    for c in range(4):
        a(f"buffer_load_dword v{ST + c}, v{vL4}, {srd(sWS)}, s{sSTc} offen offset:{c * 1024 + layer * 256} sc1")
    a("s_waitcnt vmcnt(0)")
    a(f"s_branch {again}")
    a(f"{ok}:")


def stats_ops():
    s = ST
    return [
        f"v_add_f32 v{s}, v{s}, v{s + 1}",
        f"v_add_f32 v{s + 2}, v{s + 2}, v{s + 3}",
        f"v_add_f32 v{s}, v{s}, v{s + 2}",
        f"v_mul_f32 v{s}, 0x3b000000, v{s}",
        f"v_mov_b32 v{s + 1}, v{s}",
        f"v_cmp_gt_u32 vcc, 32, v{vTID}",
        f"v_permlane32_swap_b32 v{s}, v{s + 1}",
        f"v_fma_f32 v{s + 1}, -v{s}, v{s}, v{s + 1}",
        f"v_cndmask_b32 v{s}, 0, v{s}, vcc",
        f"v_max_f32 v{s + 1}, 0, v{s + 1}",
        f"v_add_f32 v{s + 1}, 0x3727c5ac, v{s + 1}",
        f"v_rsq_f32 v{RSTD}, v{s + 1}",
        f"v_cvt_pk_bf16_f32 v{MEANB + 1}, -v{s}, 0",
        f"v_lshlrev_b32 v{s + 2}, 16, v{MEANB + 1}",
        f"v_sub_f32 v{s + 2}, -v{s}, v{s + 2}",
        f"v_cvt_pk_bf16_f32 v{MEANB}, -v{s}, v{s + 2}",
        f"v_mul_f32 v{SCL}, 0x3fb8aa3b, v{RSTD}",
    ]


def softmax(P):
    mx, sm, sm2 = T + 18, T + 20, T + 22
    a(f"v_max3_f32 v{mx}, v{P}, v{P + 1}, v{P + 2}")
    a(f"v_max3_f32 v{mx + 1}, v{P + 3}, v{P + 4}, v{P + 5}")
    a(f"v_max3_f32 v{mx}, v{mx}, v{P + 6}, v{P + 7}")
    a(f"v_max3_f32 v{mx + 1}, v{mx + 1}, v{P + 8}, v{P + 9}")
    a(f"v_max3_f32 v{mx}, v{mx}, v{P + 10}, v{P + 11}")
    a(f"v_max3_f32 v{mx + 1}, v{mx + 1}, v{P + 12}, v{P + 13}")
    a(f"v_max3_f32 v{mx}, v{mx}, v{P + 14}, v{P + 15}")
    a(f"v_max_f32 v{mx}, v{mx}, v{mx + 1}")
    a(f"v_mul_f32 v{SCL + 1}, -v{mx}, v{SCL}")
    for i in range(8):
        x = vr(P + 2 * i, 2)
        a(f"v_pk_fma_f32 {x}, {x}, {vr(SCL, 2)}, {vr(SCL, 2)} op_sel:[0,0,1] op_sel_hi:[1,0,1]")
    for i in range(16):
        a(f"v_exp_f32 v{P + i}, v{P + i}")
    a(f"v_pk_add_f32 {vr(sm, 2)}, {vr(P, 2)}, {vr(P + 2, 2)}")
    a(f"v_pk_add_f32 {vr(sm2, 2)}, {vr(P + 4, 2)}, {vr(P + 6, 2)}")
    a(f"v_pk_add_f32 {vr(sm, 2)}, {vr(sm, 2)}, {vr(P + 8, 2)}")
    a(f"v_pk_add_f32 {vr(sm2, 2)}, {vr(sm2, 2)}, {vr(P + 10, 2)}")
    a(f"v_pk_add_f32 {vr(sm, 2)}, {vr(sm, 2)}, {vr(P + 12, 2)}")
    a(f"v_pk_add_f32 {vr(sm2, 2)}, {vr(sm2, 2)}, {vr(P + 14, 2)}")
    a(f"v_pk_add_f32 {vr(sm, 2)}, {vr(sm, 2)}, {vr(sm2, 2)}")
    a(f"v_add_f32 v{sm}, v{sm}, v{sm + 1}")
    a(f"v_rcp_f32 v{sm}, v{sm}")
    for i in range(8):
        x = vr(P + 2 * i, 2)
        a(f"v_pk_mul_f32 {x}, {x}, {vr(sm, 2)} op_sel_hi:[1,0]")
    for i in range(8):
        a(f"v_cvt_pk_bf16_f32 v{P + i}, v{P + 2 * i}, v{P + 2 * i + 1}")


def poll_flag(vaddr, value):
    lab = a.label("Lpoll")
    a(f"{lab}:")
    budget_check()
    a(f"buffer_load_dword v{T + 23}, v{vaddr}, {srd(sWS)}, 0 offen sc1")
    a.wait(vm=0)
    a(f"v_cmp_gt_u32 vcc, {value}, v{T + 23}")
    a(f"s_cbranch_vccnz {lab}")


MF32 = "v_mfma_f32_32x32x16_bf16"
MF16 = "v_mfma_f32_16x16x32_bf16"
MF8 = "v_mfma_f32_32x32x8_bf16"


def prologue():
    a("s_cmp_ge_u32 s2, 0x100")
    a("s_cbranch_scc1 L_end")
    a("s_load_dwordx16 s[8:23], s[0:1], 0")
    a("s_load_dwordx4 s[24:27], s[0:1], 64")
    a("s_load_dwordx2 s[28:29], s[0:1], 80")
    a("s_getpc_b64 s[4:5]")
    a("L_pc:")
    a.c("pull this kernel's code into L2: workgroup i = id>>3 touches 2KB of it")
    a("s_lshr_b32 s3, s2, 3")
    a("s_lshl_b32 s6, s3, 5")
    a("v_lshrrev_b32 v1, 3, v0")
    a("v_add_lshl_u32 v1, v1, s6, 6")
    a("v_min_u32 v1, L_end-L_pc, v1")
    a.vm("global_load_dword v127, v1, s[4:5]", "code")
    a("v_lshrrev_b32 v2, 6, v0")
    a(f"v_and_b32 v{vTID}, 63, v0")
    a(f"v_readfirstlane_b32 s{sW}, v2")
    a("s_and_b32 s6, s2, 7")
    a("s_lshl_b32 s6, s6, 1")
    a("s_lshr_b32 s7, s3, 4")
    a(f"s_add_u32 s{sR}, s6, s7")
    a(f"s_and_b32 s{sG}, s3, 15")
    a(f"s_getreg_b32 s{sXCC}, hwreg(HW_REG_XCC_ID, 0, 4)")
    a(f"s_mov_b32 s{sBUD}, 0x40000")
    a(f"s_mov_b32 s{sFAST}, 0")
    if STAMP:
        a(f"v_mov_b32 v{vSTAMP}, 0")
    l = vTID
    t0, t1, t2, t3 = T, T + 1, T + 2, T + 3
    a(f"v_lshlrev_b32 v{vL16}, 4, v{l}")
    a(f"v_lshlrev_b32 v{vL4}, 2, v{l}")
    a(f"v_lshrrev_b32 v{t0}, 2, v{l}")
    a(f"v_and_b32 v{t1}, 3, v{l}")
    a(f"v_lshlrev_b32 v{t1}, 4, v{t1}")
    a(f"v_mul_u32_u24 v{vWdma}, 0xc00, v{t0}")
    a(f"v_add_u32 v{vWdma}, v{vWdma}, v{t1}")
    vWOdma = T + 4
    a(f"v_lshl_add_u32 v{vWOdma}, v{t0}, 10, v{t1}")
    vXe, vXo = T + 5, T + 6
    a(f"v_lshrrev_b32 v{t0}, 3, v{l}")
    a(f"v_lshrrev_b32 v{t1}, 4, v{l}")
    a(f"v_xor_b32 v{t1}, v{t1}, v{l}")
    a(f"v_and_b32 v{t1}, 7, v{t1}")
    a(f"v_lshlrev_b32 v{t1}, 4, v{t1}")
    a(f"v_lshl_add_u32 v{vXe}, v{t0}, 10, v{t1}")
    a(f"v_xor_b32 v{vXo}, 64, v{vXe}")
    vRes = T + 7
    a(f"v_and_b32 v{t0}, 31, v{l}")
    a(f"v_lshrrev_b32 v{t1}, 5, v{l}")
    a(f"v_lshlrev_b32 v{t1}, 4, v{t1}")
    a(f"v_lshl_add_u32 v{vRes}, v{t0}, 10, v{t1}")
    a(f"s_lshl_b32 s{sA}, s{sR}, 17")
    a(f"s_lshl_b32 s{sB}, s{sW}, 15")
    a(f"s_add_u32 s{sXin}, s{sA}, s{sB}")
    a(f"s_lshl_b32 s{sB}, s{sG}, 11")
    a(f"s_add_u32 s{sOst}, s{sXin}, s{sB}")
    a(f"s_lshr_b32 s{sB}, s{sG}, 2")
    a(f"s_lshl_b32 s{sB}, s{sB}, 15")
    a(f"s_add_u32 s{sA}, s{sA}, s{sB}")
    a(f"s_lshl_b32 s{sB}, s{sW}, 13")
    a(f"s_add_u32 s{sOld}, s{sA}, s{sB}")
    a(f"s_and_b32 s{sC}, s{sG}, 3")
    a(f"s_lshl_b32 s{sC}, s{sC}, 2")
    a(f"s_add_u32 s{sC}, s{sC}, s{sW}")
    a(f"s_lshl_b32 s{sB}, s{sC}, 11")
    a(f"s_add_u32 s{sXst}, s{sA}, s{sB}")
    a(f"s_lshl_b32 s{sB}, s{sC}, 6")
    a(f"s_add_u32 s{sF}, s{sA}, s{sB}")
    a(f"s_lshl_b32 s{sB}, s{sC}, 15")
    a(f"s_add_u32 s{sWOT}, s{sB}, {hex(WS_WOT)}")
    a(f"s_mul_i32 s{sB}, s{sG}, {KV_G}")
    a(f"s_add_u32 s{sKVc}, s{sB}, {hex(WS_KV)}")
    a(f"s_mul_i32 s{sB}, s{sR}, {KV_R}")
    a(f"s_add_u32 s{sKVp}, s{sKVc}, s{sB}")
    a(f"s_lshl_b32 s{sA}, s{sR}, 14")
    a(f"s_lshl_b32 s{sB}, s{sG}, 10")
    a(f"s_add_u32 s{sB}, s{sA}, s{sB}")
    a(f"s_add_u32 s{sSTp}, s{sB}, {hex(WS_ST)}")
    a(f"s_add_u32 s{sE}, s{sB}, {hex(WS_FL)}")
    a(f"s_lshl_b32 s{sB}, s{sW}, 12")
    a(f"s_mov_b32 s{sWlds}, s{sB}")
    a(f"s_add_u32 s{sB}, s{sA}, s{sB}")
    a(f"s_add_u32 s{sSTc}, s{sB}, {hex(WS_ST)}")
    a(f"s_add_u32 s{sA}, s{sA}, {hex(WS_FL)}")
    a(f"s_lshl_b32 s{sB}, s{sW}, 11")
    a(f"s_add_u32 s{sB}, s{sA}, s{sB}")
    a(f"s_lshl_b32 s{sD}, s{sG}, 2")
    a(f"s_add_u32 s{sF2p}, s{sB}, s{sD}")
    a(f"v_and_b32 v{t0}, 15, v{l}")
    a(f"s_add_u32 s{sB}, s{sB}, 1024")
    a(f"v_lshl_add_u32 v{vFl3}, v{t0}, 2, s{sB}")
    a(f"s_lshr_b32 s{sB}, s{sG}, 2")
    a(f"s_lshl_b32 s{sB}, s{sB}, 11")
    a(f"s_add_u32 s{sB}, s{sA}, s{sB}")
    a(f"s_lshl_b32 s{sD}, s{sC}, 2")
    a(f"s_add_u32 s{sF3p}, s{sB}, s{sD}")
    a(f"s_add_u32 s{sF3p}, s{sF3p}, 1024")
    a(f"s_lshl_b32 s{sD}, s{sW}, 4")
    a(f"s_add_u32 s{sB}, s{sB}, s{sD}")
    a(f"v_and_b32 v{t0}, 3, v{l}")
    a(f"v_lshl_add_u32 v{vFl2}, v{t0}, 2, s{sB}")
    a(f"s_mul_i32 s{sB}, s{sW}, {4 * 49152}")
    a(f"s_lshl_b32 s{sD}, s{sG}, 6")
    a(f"s_add_u32 s{sWdma}, s{sB}, s{sD}")
    a(f"s_add_u32 s{sA}, s{sKVp}, 8192")
    a(f"s_cmp_eq_u32 s{sW}, 0")
    a(f"s_cselect_b32 s{sA}, s{sA}, s{sSTp}")
    a(f"s_cmp_lt_u32 s{sW}, 2")
    a(f"s_cselect_b32 s{sE}, s{sA}, s{sE}")
    a(f"s_cselect_b32 s{sA}, -1, 0")
    for i in range(4):
        a(f"v_mov_b32 v{ACC0 + i}, -1")
        a(f"v_mov_b32 v{ACC0 + 4 + i}, s{sA}")
    a(f"s_lshl_b32 s{sB}, s{sW}, 10")
    a(f"s_add_u32 s{sB}, s{sKVp}, s{sB}")
    a(f"s_add_u32 s{sD}, s{sB}, 4096")
    a.wait(lg=0)
    mk_srd(sWS, 28, WS_SIZE)
    a.vm(f"buffer_store_dwordx4 {vr(ACC0, 4)}, v{vL16}, {srd(sWS)}, s{sB} offen sc1", "init")
    a.vm(f"buffer_store_dwordx4 {vr(ACC0, 4)}, v{vL16}, {srd(sWS)}, s{sD} offen sc1", "init")
    a.vm(f"buffer_store_dwordx4 {vr(ACC0 + 4, 4)}, v{vL16}, {srd(sWS)}, s{sE} offen sc1", "init")
    mk_srd(sX0, 8, 0x200000)
    a.vm(f"buffer_load_dwordx4 {vr(ACC1, 4)}, v{vRes}, {srd(sX0)}, s{sF} offen", "res")
    a.vm(f"buffer_load_dwordx4 {vr(ACC1 + 4, 4)}, v{vRes}, {srd(sX0)}, s{sF} offen offset:32", "res")
    a("s_cmp_lt_u32 s2, 0x80")
    a(f"s_cselect_b32 s{sT0}, s14, s22")
    a(f"s_cselect_b32 s{sT0 + 1}, s15, s23")
    a(f"s_mov_b32 s{sT0 + 2}, 0x80000")
    a(f"s_mov_b32 s{sT0 + 3}, 0x20000")
    a("s_lshl_b32 s6, s2, 2")
    a(f"s_add_u32 s6, s6, s{sW}")
    a("s_bfe_u32 s7, s6, 0x50004")
    a("s_and_b32 s3, s6, 15")
    a(f"s_lshl_b32 s{sA}, s7, 14")
    a(f"s_lshl_b32 s{sB}, s3, 6")
    a(f"s_add_u32 s{sA}, s{sA}, s{sB}")
    a(f"s_lshl_b32 s{sB}, s{sW}, 11")
    a(f"s_add_u32 s{sE}, s{sB}, {L_STG}")
    a(f"s_mov_b32 m0, s{sE}")
    a("s_lshr_b32 s6, s6, 9")
    a.vm(f"buffer_load_dwordx4 v{vWOdma}, {srd(sT0)}, s{sA} offen lds", "wo")
    a("s_lshl_b32 s6, s6, 19")
    a("s_lshl_b32 s3, s3, 15")
    a("s_lshl_b32 s7, s7, 10")
    a("s_add_u32 s6, s6, s3")
    a("s_add_u32 s6, s6, s7")
    a(f"s_add_u32 s6, s6, {hex(WS_WOT)}")
    a(f"s_cmp_lt_u32 s{sW}, 2")
    a(f"s_cselect_b32 s{sT1}, s12, s20")
    a(f"s_cselect_b32 s{sT1 + 1}, s13, s21")
    a(f"s_mov_b32 s{sT1 + 2}, 0x4000")
    a(f"s_mov_b32 s{sT1 + 3}, 0x20000")
    a(f"s_add_u32 m0, s{sE}, 1024")
    a(f"s_lshl_b32 s{sA}, s{sG}, 10")
    a.vm(f"buffer_load_dwordx4 v{vL16}, {srd(sT1)}, s{sA} offen lds", "wphi")

    def x_round(rd):
        a(f"s_lshl_b32 s{sB}, s{sW}, 14")
        for m in range(4):
            a(f"s_add_u32 m0, s{sB}, {L_WQ + m * 4096}")
            for p in range(4):
                a(f"s_add_u32 s{sA}, s{sXin}, {p * 7168 + (rd * 4 + m) * 128}")
                a.vm(f"buffer_load_dwordx4 v{vXo if p & 1 else vXe}, {srd(sX0)}, s{sA} offen offset:{p * 1024} lds", f"x{rd}")
    x_round(0)
    mk_srd(sWA, 10, 0x180000)
    for half in range(2):
        for seg in "kv":
            for grp in w_dma(sWA, seg, half):
                emit_dma(grp, f"w{half}")
    mk_srd(sWB, 18, 0x180000)
    mk_srd(sOUT, 24, 0x200000)
    mk_srd(sDBG, 26, 0x100)
    q, rr, cc = T + 8, T + 9, T + 10
    a(f"v_lshrrev_b32 v{q}, 4, v{l}")
    a(f"v_bfe_u32 v{rr}, v{l}, 2, 2")
    a(f"v_and_b32 v{cc}, 3, v{l}")
    a(f"v_lshrrev_b32 v{t0}, 5, v{l}")
    a(f"v_lshl_add_u32 v{t0}, v{t0}, 3, v{rr}")
    a(f"v_lshlrev_b32 v{vWtr}, 6, v{t0}")
    a(f"v_and_b32 v{t1}, 1, v{q}")
    a(f"v_lshl_add_u32 v{vWtr}, v{t1}, 5, v{vWtr}")
    a(f"v_and_b32 v{t2}, 1, v{cc}")
    a(f"v_lshl_add_u32 v{vWtr}, v{t2}, 4, v{vWtr}")
    a(f"v_lshrrev_b32 v{t3}, 1, v{cc}")
    a(f"v_lshl_add_u32 v{vWtr}, v{t3}, 3, v{vWtr}")
    a(f"v_add_u32 v{vWtrq}, {hex(L_WQ)}, v{vWtr}")
    vPhi = T + 11
    a(f"v_lshl_add_u32 v{vPhi}, v{t1}, 1, v{t3}")
    a(f"v_lshlrev_b32 v{vPhi}, 3, v{vPhi}")
    a(f"v_lshl_add_u32 v{vPhi}, v{t0}, 5, v{vPhi}")
    a(f"s_and_b32 s{sA}, s{sW}, 1")
    a(f"s_lshl_b32 s{sA}, s{sA}, 9")
    a(f"s_add_u32 s{sA}, s{sA}, s{sE}")
    a(f"v_add_u32 v{vPhi}, s{sA}, v{vPhi}")
    vWoR = T + 12
    a(f"v_add_u32 v{vWoR}, s{sE}, v{vWtr}")
    a(f"v_lshl_add_u32 v{t0}, v{q}, 2, v{rr}")
    a(f"v_xor_b32 v{t3}, v{t3}, v{t1}")
    a(f"v_lshlrev_b32 v{t3}, 4, v{t3}")
    a(f"v_lshl_add_u32 v{t3}, v{t2}, 3, v{t3}")
    a(f"v_lshl_add_u32 v{t0}, v{t0}, 5, v{t3}")
    a(f"s_add_u32 s{sA}, s{sWlds}, {L_R}")
    a(f"v_add_u32 v{vPKr}, s{sA}, v{t0}")
    a(f"s_lshr_b32 s{sA}, s{sW}, 1")
    a(f"s_lshl_b32 s{sA}, s{sA}, 12")
    a(f"s_add_u32 s{sA}, s{sA}, {L_V}")
    a(f"v_add_u32 v{vVr}, s{sA}, v{t0}")
    a(f"v_and_b32 v{t0}, 31, v{l}")
    a(f"v_lshlrev_b32 v{t0}, 5, v{t0}")
    a(f"s_lshl_b32 s{sA}, s{sW}, 10")
    a(f"s_add_u32 s{sA}, s{sA}, {L_R}")
    a(f"v_add_u32 v{t0}, s{sA}, v{t0}")
    a(f"v_lshrrev_b32 v{t1}, 5, v{l}")
    a(f"v_and_b32 v{t2}, 1, v{rr}")
    a(f"v_lshl_add_u32 v{vPKw0}, v{t1}, 12, v{t0}")
    a(f"v_lshl_add_u32 v{vPKw0}, v{t2}, 4, v{vPKw0}")
    a(f"v_xor_b32 v{vPKw1}, 16, v{vPKw0}")
    a(f"v_xor_b32 v{t2}, v{t2}, v{t1}")
    a(f"v_lshl_add_u32 v{vVw}, v{t2}, 4, v{t0}")
    a(f"v_add_u32 v{vVw}, 0x4000, v{vVw}")
    a(f"v_and_b32 v{t0}, 15, v{l}")
    a(f"s_lshl_b32 s{sA}, s{sW}, 9")
    a(f"s_lshl_b32 s{sB}, s{sW}, 5")
    a(f"s_add_u32 s{sB}, s{sB}, 2048")
    a(f"v_lshl_add_u32 v{vKVst}, v{q}, 3, s{sA}")
    a(f"v_lshl_add_u32 v{vKVst}, v{t0}, 5, v{vKVst}")
    a(f"v_lshl_add_u32 v{vZst}, v{q}, 3, s{sB}")
    a(f"v_mul_u32_u24 v{t1}, {hex(KV_R)}, v{q}")
    a(f"v_lshl_add_u32 v{vKVld}, v{t0}, 4, v{t1}")
    a(f"v_add_u32 v{vKVld}, s{sA}, v{vKVld}")
    a(f"v_and_b32 v{t2}, 1, v{l}")
    a(f"v_lshl_add_u32 v{vZld}, v{t2}, 4, v{t1}")
    a(f"v_add_u32 v{vZld}, s{sB}, v{vZld}")
    a(f"s_lshr_b32 s{sA}, s{sW}, 1")
    a(f"s_mul_i32 s{sA}, s{sA}, {KVH}")
    a(f"s_and_b32 s{sB}, s{sW}, 1")
    a(f"s_lshl_b32 s{sB}, s{sB}, 5")
    a(f"s_add_u32 s{sA}, s{sA}, s{sB}")
    a(f"s_add_u32 s{sA}, s{sA}, {L_KV}")
    a(f"v_and_b32 v{t1}, 1, v{q}")
    a(f"v_lshlrev_b32 v{t1}, 3, v{t1}")
    a(f"v_lshl_add_u32 v{t1}, v{t2}, 4, v{t1}")
    a(f"v_add_u32 v{t1}, s{sA}, v{t1}")
    a(f"v_add_u32 v{vZw}, {16 * KVROW}, v{t1}")
    a(f"v_lshrrev_b32 v{t2}, 1, v{t0}")
    a(f"v_lshrrev_b32 v{t3}, 5, v{l}")
    a(f"v_lshl_add_u32 v{t2}, v{t3}, 3, v{t2}")
    a(f"v_mul_u32_u24 v{t2}, {KVROW}, v{t2}")
    a(f"v_add_u32 v{vKVw}, v{t1}, v{t2}")
    a(f"v_and_b32 v{t0}, 1, v{rr}")
    a(f"v_lshl_add_u32 v{t0}, v{t0}, 3, v{cc}")
    a(f"v_bfe_u32 v{t1}, v{l}, 3, 1")
    a(f"v_lshl_add_u32 v{t0}, v{t1}, 2, v{t0}")
    a(f"v_and_b32 v{t1}, 16, v{l}")
    a(f"v_cmp_eq_u32 vcc, 0, v{t1}")
    a(f"v_cndmask_b32 v{t0}, 16, v{t0}, vcc")
    a(f"v_mul_u32_u24 v{t0}, {KVROW}, v{t0}")
    a(f"v_lshl_add_u32 v{t0}, v{t3}, 5, v{t0}")
    a(f"v_add_u32 v{vKVr}, {hex(L_KV)}, v{t0}")
    a(f"v_add_u32 v{vOrd}, {hex(L_R)}, v{vL16}")
    a(f"v_add_u32 v{vCst}, {hex(L_KV)}, v{vL16}")
    a(f"v_add_u32 v{vL4c}, {hex(L_CS)}, v{vL4}")
    vXr = T + 16
    a(f"v_and_b32 v{t0}, 31, v{l}")
    a(f"v_bfe_u32 v{t1}, v{l}, 1, 3")
    a(f"v_xor_b32 v{t1}, v{t1}, v{t3}")
    a(f"v_lshlrev_b32 v{t1}, 4, v{t1}")
    a(f"v_lshl_add_u32 v{t0}, v{t0}, 7, v{t1}")
    a(f"s_lshl_b32 s{sA}, s{sW}, 14")
    a(f"s_add_u32 s{sA}, s{sA}, {L_WQ}")
    XR = [T + 20, T + 21, T + 22, T + 19]
    a(f"v_add_u32 v{XR[0]}, s{sA}, v{t0}")
    for u in range(1, 4):
        a(f"v_xor_b32 v{XR[u]}, {u * 32}, v{XR[0]}")
    a(f"v_and_b32 v{t0}, 1, v{l}")
    a(f"v_lshlrev_b32 v{t0}, 4, v{t0}")
    a(f"v_mov_b32 v{t1}, 0x3f80")
    a(f"v_lshlrev_b32 v{t1}, v{t0}, v{t1}")
    a(f"v_bfe_u32 v{t0}, v{l}, 1, 3")
    for i in range(8):
        a(f"v_cmp_eq_u32 vcc, {i}, v{t0}")
        a(f"v_cndmask_b32 v{RING + i}, 0, v{t1}, vcc")
    a.ds(f"ds_write_b128 v{vCst}, {vr(RING, 4)} offset:{L_ID - L_KV}")
    a.ds(f"ds_write_b128 v{vCst}, {vr(RING + 4, 4)} offset:{L_ID - L_KV + 1024}")
    stamp("addr")
    a.wait(vm="res")
    stamp("res")
    for i in range(8):
        a(f"v_lshlrev_b32 v{RES + 2 * i}, 16, v{ACC1 + i}")
        a(f"v_and_b32 v{RES + 2 * i + 1}, 0xffff0000, v{ACC1 + i}")
    stats_partial()
    a.wait(vm="wphi")
    a.ds(f"ds_read_b64_tr_b16 {vr(RING, 2)}, v{vWoR}", "wo")
    a.ds(f"ds_read_b64_tr_b16 {vr(RING + 2, 2)}, v{vWoR} offset:256", "wo")
    a.ds(f"ds_read_b64_tr_b16 {vr(RING + 4, 2)}, v{vPhi} offset:1024", "ph")
    a.ds(f"ds_read_b64_tr_b16 {vr(RING + 6, 2)}, v{vPhi} offset:{1024 + 128}", "ph")
    a(f"v_bfe_u32 v{t0}, v{l}, 2, 1")
    a(f"v_mul_u32_u24 v{t0}, 0x8000, v{t0}")
    a(f"v_lshl_add_u32 v{t0}, v{t0}, 16, v{t0}")
    a(f"s_lshl_b32 s{sA}, s{sW}, 10")
    a(f"v_add_u32 v{t1}, s{sA}, v{vCst}")
    a.wait(lg="wo")
    a.vm(f"buffer_store_dwordx4 {vr(RING, 4)}, v{vL16}, {srd(sWS)}, s6 offen sc1", "wot")
    a.wait(lg="ph")
    for i in range(4):
        a(f"v_xor_b32 v{RING + 4 + i}, v{t0}, v{RING + 4 + i}")
    a.ds(f"ds_write_b128 v{t1}, {vr(RING + 4, 4)} offset:{L_WPHI - L_KV}")
    a.wait(lg=0)
    a("s_barrier")
    stats_publish(0, True)

    def handshake(wave, val_lines):
        lab = a.label("Lhs")
        a(f"s_cmp_lg_u32 s{sW}, {wave}")
        a(f"s_cbranch_scc1 {lab}")
        for t in val_lines:
            a(t)
        a(f"s_and_b32 s{sB}, s{sG}, 3")
        a(f"s_lshl_b32 s{sB}, s{sB}, 3")
        a(f"s_lshl_b32 s{sA}, s{sA}, s{sB}")
        a(f"s_lshl_b32 s{sB}, s{sR}, 4")
        a(f"s_and_b32 s{sC}, s{sG}, 12")
        a(f"s_add_u32 s{sB}, s{sB}, s{sC}")
        a(f"v_mov_b32 v{T}, s{sA}")
        a("s_mov_b64 exec, 1")
        a(f"buffer_atomic_or v{T}, off, {srd(sDBG)}, s{sB} sc1")
        a("s_mov_b64 exec, -1")
        a(f"{lab}:")
    handshake(1, [f"s_or_b32 s{sA}, s{sXCC}, 0x80"])
    a.wait(vm="x0")
    stamp("x0")

    def x_frags(rd):
        for m in range(4):
            for u in range(4):
                a.ds(f"ds_read_b128 {vr(XF + (rd * 16 + m * 4 + u) * 4, 4)}, v{XR[u]} offset:{m * 4096}")
        a.wait(lg=0)
    x_frags(0)
    x_round(1)
    a(f"s_lshl_b32 s{sA}, s{sR}, 4")
    a(f"v_and_b32 v{T + 18}, 12, v{vL4}")
    a.vm(f"buffer_load_dword v{T + 23}, v{T + 18}, {srd(sDBG)}, s{sA} offen sc1", "dbg")
    a.wait(vm="w0")
    stamp("w0")
    colsum([("k", 0), ("v", 0)], 0, True)
    a("s_barrier")
    gemm_kv(0, range(0, 16))
    stamp("g0")
    a.wait(vm="x1")
    stamp("x1")
    x_frags(1)
    colsum([("k", 1), ("v", 1)], 0, False)
    colsum_write("kv", 0)
    a.wait(vm=0)
    lab, ok = a.label("Lh1"), a.label("Lh1ok")
    a(f"{lab}:")
    a(f"v_and_b32 v{T + 22}, 0x80808080, v{T + 23}")
    a(f"v_cmp_ne_u32 vcc, 0x80808080, v{T + 22}")
    a(f"s_cbranch_vccz {ok}")
    budget_check()
    a(f"s_lshl_b32 s{sA}, s{sR}, 4")
    a(f"buffer_load_dword v{T + 23}, v{T + 18}, {srd(sDBG)}, s{sA} offen sc1")
    a("s_waitcnt vmcnt(0)")
    a(f"s_branch {lab}")
    a(f"{ok}:")
    stats_loads(0)
    a(f"s_mul_i32 s{sA}, s{sXCC}, 0x01010101")
    a(f"v_and_b32 v{T + 22}, 0x0f0f0f0f, v{T + 23}")
    a(f"v_cmp_ne_u32 vcc, s{sA}, v{T + 22}")
    a("s_cmp_eq_u64 vcc, 0")
    a(f"s_cselect_b32 s{sFAST}, 1, 0")
    if "--slow" in sys.argv:
        a(f"s_mov_b32 s{sFAST}, 0")
    a.wait(lg=0)
    a("s_barrier")
    handshake(1, [f"s_mov_b32 s{sA}, 0x40"])
    stamp("b2")


def gemm_kv(layer, steps):
    steps = list(steps)
    last = steps[-1] == 31
    from_vm = layer > 0
    st = layer & 1
    LAG = 2 if last else 0
    seq = []
    kq, vq = list(steps), list(steps)
    while kq or vq:
        if kq:
            seq.append(("k", kq.pop(0)))
        if vq and (len(vq) - len(kq) > LAG or not kq):
            seq.append(("v", vq.pop(0)))
    fillers = []
    extra = {}

    def at(pos, fn):
        extra.setdefault(pos, []).append(fn)
    if last:
        n = len(seq)
        if layer == 0:
            for i, grp in enumerate(w_dma(sWA, "q", 0) + w_dma(sWA, "q", 1)):
                at(1 + 2 * i, lambda grp=grp: emit_dma(grp, "wq"))
        p0 = n - 26
        at(p0, lambda: cs_frag_read("k", st, CSK, "csk"))
        at(p0 + 1, lambda: cs_frag_read("v", st, CSV, "csv"))
        ops = cs_frag_ops(CSK) + cs_frag_ops(CSV)
        at(p0 + 4, lambda: a.wait(lg="csv"))
        for i in range(0, len(ops), 3):
            at(p0 + 4 + i // 3, lambda i=i: [a(t) for t in ops[i:i + 3]])
        p1 = n - 16

        def chk():
            a.wait(vm="st")
            stats_check(layer)
        at(p1, chk)
        sops = stats_ops()
        for i in range(0, len(sops), 3):
            at(p1 + 1 + i // 3, lambda i=i: [a(t) for t in sops[i:i + 3]])
        at(n - 8, lambda: a(f"{MF8} {vr(ACC0, 16)}, {vr(CSK, 2)}, {vr(MEANB, 2)}, {vr(ACC0, 16)}"))
        at(n - 7, lambda: a(f"{MF8} {vr(ACC1, 16)}, {vr(CSV, 2)}, {vr(MEANB, 2)}, {vr(ACC1, 16)}"))

        def phi_rd():
            for h in range(2):
                a.ds(f"ds_read_b128 {vr(WPH + 4 * h, 4)}, v{vCst} offset:{L_WPHI - L_KV + (st * 2 + h) * 1024}", "wph")
        at(n - 5, phi_rd)
    PF = 6
    if not gemm_kv.preissued:
        for i in range(PF):
            w_read(seq[i][0], seq[i][1], RING + (i % 8) * 4, f"w{i}")
    gemm_kv.preissued = False
    for i, (seg, ks) in enumerate(seq):
        a.wait(vm=(f"x{ks}" if from_vm and seg == "k" else None), lg=f"w{i}")
        acc = ACC0 if seg == "k" else ACC1
        a(f"{MF32} {vr(acc, 16)}, {vr(RING + (i % 8) * 4, 4)}, {vr(XF + ks * 4, 4)}, {'0' if ks == 0 else vr(acc, 16)}")
        if i + PF < len(seq):
            w_read(seq[i + PF][0], seq[i + PF][1], RING + ((i + PF) % 8) * 4, f"w{i + PF}")
        for fn in extra.get(i, []):
            fn()


gemm_kv.preissued = False


def kv_preissue():
    seq = [("k", 0), ("k", 1), ("k", 2), ("v", 0), ("k", 3), ("v", 1)]
    for i in range(6):
        w_read(seq[i][0], seq[i][1], RING + (i % 8) * 4, f"w{i}")
    gemm_kv.preissued = True


def feature_map(acc):
    for i in range(8):
        a(f"v_cvt_pk_bf16_f32 v{acc + i}, v{acc + 2 * i}, v{acc + 2 * i + 1}")
    a.wait(lg="wph")
    a(f"{MF32} {vr(P0, 16)}, {vr(WPH, 4)}, {vr(acc, 4)}, 0")
    a(f"{MF32} {vr(P1, 16)}, {vr(WPH + 4, 4)}, {vr(acc + 4, 4)}, 0")


def layer_body(layer):
    st = layer & 1
    Wn = sWA if st else sWB
    more = layer < NLAYERS - 1
    a.c(f"================ layer {layer}")
    if layer == 0:
        gemm_kv(0, range(16, 32))
    else:
        kv_preissue()
        poll_flag(vFl3, layer)
        stamp("f3")
        for ks in range(32):
            if ks % 4 == 0:
                a(f"s_add_u32 s{sA}, s{sXin}, {ks * 1024}")
            a.vm(f"buffer_load_dwordx4 {vr(XF + ks * 4, 4)}, v{vL16}, {srd(sOUT)}, s{sA} offen offset:{(ks % 4) * 1024} sc1", f"x{ks}")
            if ks == 19:
                stats_loads(layer)
        gemm_kv(layer, range(32))
    stamp("gkv")
    feature_map(ACC0)
    for i in range(8):
        x = vr(ACC1 + 2 * i, 2)
        a(f"v_pk_mul_f32 {x}, {x}, {vr(RSTD, 2)} op_sel_hi:[1,0]")
    for i in range(8):
        a(f"v_cvt_pk_bf16_f32 v{ACC1 + i}, v{ACC1 + 2 * i}, v{ACC1 + 2 * i + 1}")
    a.ds(f"ds_write_b128 v{vVw}, {vr(ACC1, 4)}")
    a.ds(f"ds_write_b128 v{vVw}, {vr(ACC1 + 4, 4)} offset:4096")
    for h, P in enumerate((P0, P1)):
        softmax(P)
        a.ds(f"ds_write_b128 v{vPKw0}, {vr(P, 4)} offset:{h * 8192}")
        a.ds(f"ds_write_b128 v{vPKw1}, {vr(P + 4, 4)} offset:{h * 8192}")
    ONES = ACC1 + 8
    for i in range(4):
        a(f"v_mov_b32 v{ONES + i}, 0x3f803f80")
    a.wait(vm=(0 if layer == 0 else None), lg=0)
    a("s_barrier")
    stamp("pk")
    for m in range(4):
        for t in range(2):
            a.ds(f"ds_read_b64_tr_b16 {vr(RING + m * 8 + t * 2, 2)}, v{vPKr} offset:{m * 1024 + t * 512}", f"m{m}")
        for t in range(2):
            a.ds(f"ds_read_b64_tr_b16 {vr(RING + m * 8 + 4 + t * 2, 2)}, v{vVr} offset:{m * 1024 + t * 512}", f"m{m}")
    DKV, DZ = ACC1, ACC1 + 4
    for m in range(4):
        a.wait(lg=f"m{m}")
        a(f"{MF16} {vr(DKV, 4)}, {vr(RING + m * 8, 4)}, {vr(RING + m * 8 + 4, 4)}, {'0' if m == 0 else vr(DKV, 4)}")
        a(f"{MF16} {vr(DZ, 4)}, {vr(RING + m * 8, 4)}, {vr(ONES, 4)}, {'0' if m == 0 else vr(DZ, 4)}")
    a(f"s_add_u32 s{sA}, s{sKVp}, {layer * KV_L}")
    a(f"s_mov_b32 s{sEX}, 0x00010001")
    a(f"s_mov_b32 s{sEX + 1}, 0x00010001")
    a(f"v_cvt_pk_bf16_f32 v{DKV}, v{DKV}, v{DKV + 1}")
    a(f"v_cvt_pk_bf16_f32 v{DKV + 1}, v{DKV + 2}, v{DKV + 3}")
    a.vm(f"buffer_store_dwordx2 {vr(DKV, 2)}, v{vKVst}, {srd(sWS)}, s{sA} offen sc1")
    a(f"v_cvt_pk_bf16_f32 v{DZ}, v{DZ}, v{DZ + 1}")
    a(f"v_cvt_pk_bf16_f32 v{DZ + 1}, v{DZ + 2}, v{DZ + 3}")
    a(f"s_mov_b64 exec, s[{sEX}:{sEX + 1}]")
    a.vm(f"buffer_store_dwordx2 {vr(DZ, 2)}, v{vZst}, {srd(sWS)}, s{sA} offen sc1")
    a("s_mov_b64 exec, -1")
    stamp("pub")
    if layer == 0:
        a.vm(f"buffer_load_dword v{T + 23}, v{vL4}, {srd(sDBG)}, 0 offen sc1", "dbg")
        for i in range(6):
            a(f"v_mov_b32 v{ACC1 + 8 + i}, v{T + 12 + i}")
        colsum([("q", 0), ("q", 1)], 0, True)
        colsum_write("q", 0)
        for i in range(6):
            a(f"v_mov_b32 v{T + 12 + i}, v{ACC1 + 8 + i}")
        a.wait(lg=0)
        a("s_barrier")
    PART = XF

    def part_loads(track):
        for i in range(4):
            a(f"s_add_u32 s{sA}, s{sKVc}, {layer * KV_L + i * 4 * KV_R}")
            for j, (va, off) in enumerate(((vKVld, 0), (vKVld, 256), (vZld, 0))):
                t = f"buffer_load_dwordx4 {vr(PART + (i * 3 + j) * 4, 4)}, v{va}, {srd(sWS)}, s{sA} offen offset:{off} sc1"
                if track:
                    a.vm(t, "part")
                else:
                    a(t)
    extra = {}

    def at(pos, fn):
        extra.setdefault(pos, []).append(fn)
    if more:
        for i, grp in enumerate(w_dma(Wn, "k", 0) + w_dma(Wn, "k", 1)):
            at(2 * i, lambda grp=grp: emit_dma(grp, "wn"))
    CSQ = T + 8
    at(4, lambda: cs_frag_read("q", st, CSQ, "csq"))
    at(8, lambda: a.wait(lg="csq"))
    ops = cs_frag_ops(CSQ)
    for i in range(0, len(ops), 3):
        at(8 + i // 3, lambda i=i: [a(t) for t in ops[i:i + 3]])
    at(13, lambda: a(f"{MF8} {vr(ACC0, 16)}, {vr(CSQ, 2)}, {vr(MEANB, 2)}, {vr(ACC0, 16)}"))

    def exch():
        if layer == 0:
            a.wait(vm="dbg")
            lab, ok = a.label("Lh2"), a.label("Lh2ok")
            a(f"{lab}:")
            a(f"v_and_b32 v{T + 22}, 0xc0c0c0c0, v{T + 23}")
            a(f"v_cmp_ne_u32 vcc, 0xc0c0c0c0, v{T + 22}")
            a(f"s_cbranch_vccz {ok}")
            budget_check()
            a(f"buffer_load_dword v{T + 23}, v{vL4}, {srd(sDBG)}, 0 offen sc1")
            a("s_waitcnt vmcnt(0)")
            a(f"s_branch {lab}")
            a(f"{ok}:")
        part_loads(True)
    at(18, exch)
    if layer < 2:
        for n in range(32):
            def wl(n=n):
                if n % 4 == 0:
                    a(f"s_add_u32 s{sB}, s{sWOT}, {st * 0x80000 + n * 1024}")
                a.vm(f"buffer_load_dwordx4 {ar(st * 128 + n * 4, 4)}, v{vL16}, {srd(sWS)}, s{sB} offen offset:{(n % 4) * 1024} sc1", "wot")
            at(20 + n // 3, wl)
    PF = 6
    for i in range(PF):
        w_read("q", i, RING + (i % 8) * 4, f"q{i}")
    for ks in range(32):
        a.wait(lg=f"q{ks}")
        a(f"{MF32} {vr(ACC0, 16)}, {vr(RING + (ks % 8) * 4, 4)}, {vr(XF + ks * 4, 4)}, {'0' if ks == 0 else vr(ACC0, 16)}")
        if ks + PF < 32:
            w_read("q", ks + PF, RING + ((ks + PF) % 8) * 4, f"q{ks + PF}")
        for fn in extra.get(ks, []):
            fn()
    IDN = XF + 64
    a.ds(f"ds_read_b128 {vr(IDN, 4)}, v{vCst} offset:{L_ID - L_KV}", "id")
    a.ds(f"ds_read_b128 {vr(IDN + 4, 4)}, v{vCst} offset:{L_ID - L_KV + 1024}", "id")
    feature_map(ACC0)
    softmax(P0)
    softmax(P1)
    stamp("q")
    a.wait(vm="part", lg="id")
    again, ok = a.label("Lpart"), a.label("Lpartok")
    a(f"{again}:")
    for i in range(4):
        a(f"{MF16} {vr(DKV, 4)}, {vr(IDN, 4)}, {vr(PART + (i * 3) * 4, 4)}, {'0' if i == 0 else vr(DKV, 4)}")
        a(f"{MF16} {vr(DKV, 4)}, {vr(IDN + 4, 4)}, {vr(PART + (i * 3 + 1) * 4, 4)}, {vr(DKV, 4)}")
        a(f"{MF16} {vr(DZ, 4)}, {vr(IDN, 4)}, {vr(PART + (i * 3 + 2) * 4, 4)}, {'0' if i == 0 else vr(DZ, 4)}")
    a(f"s_mov_b32 s{sEX}, 0x00030003")
    a(f"s_mov_b32 s{sEX + 1}, 0")
    a(f"v_cmp_u_f32 vcc, v{DKV}, v{DZ}")
    a(f"s_cbranch_vccz {ok}")
    a.c("a NaN: either a slot that still holds the fill pattern (reload) or a NaN in the data (go on)")
    a(f"v_max3_u32 v{T}, v{PART}, v{PART + 1}, v{PART + 2}")
    for i in range(3, 47, 2):
        a(f"v_max3_u32 v{T}, v{T}, v{PART + i}, v{PART + i + 1}")
    a(f"v_max_u32 v{T}, v{T}, v{PART + 47}")
    a(f"v_cmp_eq_u32 vcc, -1, v{T}")
    a(f"s_cbranch_vccz {ok}")
    budget_check()
    part_loads(False)
    a("s_waitcnt vmcnt(0)")
    a(f"s_branch {again}")
    a(f"{ok}:")
    stamp("part")
    a(f"v_cvt_pk_bf16_f32 v{DKV}, v{DKV}, v{DKV + 1}")
    a(f"v_cvt_pk_bf16_f32 v{DKV + 1}, v{DKV + 2}, v{DKV + 3}")
    a(f"v_cvt_pk_bf16_f32 v{DZ}, v{DZ}, v{DZ + 1}")
    a(f"v_cvt_pk_bf16_f32 v{DZ + 1}, v{DZ + 2}, v{DZ + 3}")
    a.ds(f"ds_write_b64 v{vKVw}, {vr(DKV, 2)}")
    a(f"s_mov_b64 exec, s[{sEX}:{sEX + 1}]")
    a.ds(f"ds_write_b64 v{vZw}, {vr(DZ, 2)}")
    a("s_mov_b64 exec, -1")
    a.wait(lg=0)
    a("s_barrier")
    KVF = XF
    for h in range(2):
        for i in range(2):
            a.ds(f"ds_read_b128 {vr(KVF + (h * 2 + i) * 4, 4)}, v{vKVr} offset:{h * KVH + i * 16}", f"kv{h}")
    for h, (P, acc) in enumerate(((P0, ACC0), (P1, ACC1))):
        a.wait(lg=f"kv{h}")
        a(f"{MF32} {vr(acc, 16)}, {vr(KVF + h * 8, 4)}, {vr(P, 4)}, 0")
        a(f"{MF32} {vr(acc, 16)}, {vr(KVF + h * 8 + 4, 4)}, {vr(P + 4, 4)}, {vr(acc, 16)}")
    a(f"v_mov_b32 v{T + 2}, {layer + 1}")
    for acc in (ACC0, ACC1):
        a(f"v_add_f32 v{acc + 8}, 0x358637bd, v{acc + 8}")
        a(f"v_rcp_f32 v{acc + 8}, v{acc + 8}")
        for i in range(4):
            x = vr(acc + 2 * i, 2)
            a(f"v_pk_mul_f32 {x}, {x}, {vr(acc + 8, 2)} op_sel_hi:[1,0]")
        for i in range(4):
            a(f"v_cvt_pk_bf16_f32 v{acc + i}, v{acc + 2 * i}, v{acc + 2 * i + 1}")
    dual_store([
        f"buffer_store_dwordx4 {vr(ACC0, 4)}, v{vL16}, {srd(sWS)}, s{sOst} offen",
        f"buffer_store_dwordx4 {vr(ACC1, 4)}, v{vL16}, {srd(sWS)}, s{sOst} offen offset:1024",
        "s_mov_b64 exec, 1",
        "s_waitcnt vmcnt(0)",
        f"buffer_store_dword v{T + 2}, off, {srd(sWS)}, s{sF2p}",
        "s_mov_b64 exec, -1",
    ])
    a.vmq = []
    stamp("o")
    poll_flag(vFl2, layer + 1)
    stamp("f2")
    a(f"s_lshl_b32 s{sB}, s{sW}, 13")
    for j in range(8):
        if j % 4 == 0:
            a(f"s_add_u32 m0, s{sB}, {L_R + j * 1024}")
            a(f"s_add_u32 s{sA}, s{sOld}, {j * 1024}")
        a.vm(f"buffer_load_dwordx4 v{vL16}, {srd(sWS)}, s{sA} offen offset:{(j % 4) * 1024} sc1 lds", "o")
    a.wait(vm=0)
    a("s_barrier")
    stamp("old")
    extra = {}
    if more:
        grps = w_dma(Wn, "v", 0) + w_dma(Wn, "v", 1) + w_dma(Wn, "q", 0) + w_dma(Wn, "q", 1)
        for i, grp in enumerate(grps):
            at(i + i // 2, lambda grp=grp: emit_dma(grp, "wn"))
    PF = 7
    for i in range(PF):
        a.ds(f"ds_read_b128 {vr(RING + (i % 8) * 4, 4)}, v{vOrd} offset:{i * 1024}", f"o{i}")
    for ks in range(32):
        a.wait(lg=f"o{ks}")
        a(f"{MF32} {vr(RES, 16)}, {ar(st * 128 + ks * 4, 4)}, {vr(RING + (ks % 8) * 4, 4)}, {vr(RES, 16)}")
        if ks + PF < 32:
            a.ds(f"ds_read_b128 {vr(RING + ((ks + PF) % 8) * 4, 4)}, v{vOrd} offset:{(ks + PF) * 1024}", f"o{ks + PF}")
        for fn in extra.get(ks, []):
            fn()
    if not more:
        a(f"v_and_b32 v{T}, 31, v{vTID}")
        a(f"v_lshrrev_b32 v{T + 1}, 5, v{vTID}")
        a(f"v_lshlrev_b32 v{T + 1}, 4, v{T + 1}")
        a(f"v_lshl_add_u32 v{T}, v{T}, 10, v{T + 1}")
    else:
        a(f"v_mov_b32 v{T + 6}, {layer + 1}")
    for i in range(8):
        a(f"v_cvt_pk_bf16_f32 v{ACC0 + i}, v{RES + 2 * i}, v{RES + 2 * i + 1}")
    if not more:
        a.vm(f"buffer_store_dwordx4 {vr(ACC0, 4)}, v{T}, {srd(sOUT)}, s{sF} offen")
        a.vm(f"buffer_store_dwordx4 {vr(ACC0 + 4, 4)}, v{T}, {srd(sOUT)}, s{sF} offen offset:32")
        stamp("end")
        return
    dual_store([
        f"buffer_store_dwordx4 {vr(ACC0, 4)}, v{vL16}, {srd(sOUT)}, s{sXst} offen",
        f"buffer_store_dwordx4 {vr(ACC0 + 4, 4)}, v{vL16}, {srd(sOUT)}, s{sXst} offen offset:1024",
    ])
    stats_partial()
    dual_store([
        "s_mov_b64 exec, 1",
        "s_waitcnt vmcnt(0)",
        f"buffer_store_dword v{T + 6}, off, {srd(sWS)}, s{sF3p}",
        "s_mov_b64 exec, -1",
    ])
    a.vmq = []
    stamp("x")
    if layer == 0:
        colsum([(s, h) for s in "kvq" for h in range(2)], 1, True)
        colsum_write("kvq", 1)
    a.wait(lg=0)
    a("s_barrier")
    stats_publish(layer + 1, False)


def main():
    prologue()
    for layer in range(NLAYERS):
        layer_body(layer)
    if STAMP:
        a(f"s_lshl_b32 s{sA}, s2, 2")
        a(f"s_add_u32 s{sA}, s{sA}, s{sW}")
        a(f"s_lshl_b32 s{sA}, s{sA}, 8")
        a(f"s_add_u32 s{sA}, s{sA}, {hex(WS_STAMP)}")
        a(f"buffer_store_dword v{vSTAMP}, v{vL4}, {srd(sWS)}, s{sA} offen")
    a("L_end:")
    a("s_endpgm")
    n = a.fix_hazards(verbose="-v" in sys.argv)
    head = open("cdna_kernels/" + NAME + ".s.ref").read().split("; Override launch")[0]
    txt = head
    txt += "; Persistent kernel: 256 workgroups (one per CU), generated by the author's script.\n"
    txt += f"; @launch grid=(256,1,1) block=(256,1,1) lds={L_END}\n"
    txt += f""".amdgcn_target "amdgcn-amd-amdhsa--gfx950"
.text
.globl {NAME}_kernel
.p2align 8
.type {NAME}_kernel,@function
{NAME}_kernel:
"""
    txt += a.text()
    txt += f""".section .rodata,"a"
.p2align 6
.amdhsa_kernel {NAME}_kernel
  .amdhsa_next_free_vgpr 512
  .amdhsa_next_free_sgpr 96
  .amdhsa_accum_offset 256
  .amdhsa_group_segment_fixed_size 0
  .amdhsa_kernarg_size 88
  .amdhsa_user_sgpr_count 2
  .amdhsa_user_sgpr_kernarg_segment_ptr 1
  .amdhsa_system_sgpr_workgroup_id_x 1
  .amdhsa_float_denorm_mode_32 3
.end_amdhsa_kernel
"""
    outp = [x for x in sys.argv[1:] if x.endswith(".s")]
    outp = outp[0] if outp else "cdna_kernels/" + NAME + ".s"
    open(outp, "w").write(txt)
    if STAMP:
        open(outp + ".stamps", "w").write("\n".join(stamp_names))
    print("wrote", outp, "nop states inserted:", n, "instrs:", sum(1 for i in a.out if i.mn), file=sys.stderr)


main()
```

```python
import sys
from asmlib import Asm

NAME = "interleave_layers__linear_kernel_hedgehog__linear_kernel_hedgehog__prompt"
STAMP = "--stamp" in sys.argv
NLAYERS = 4

WS_O = 0x000000
WS_WOT = 0x200000
WS_KV = 0x300000
KV_L = 2304
KV_R = 9216
KV_G = 16 * KV_R
WS_ST = 0x540000
WS_FL = 0x580000
WS_RDY = 0x5c0000
WS_STAMP = 0x600000
WS_SIZE = 0x800000

L_WK = 0
L_WV = 32768
L_WQ = 65536
L_R = 98304
L_V = L_R + 16384
L_KV = 147456
KVROW = 80
KVH = 17 * KVROW
L_WPHI = L_KV + 3072
L_ID = L_WPHI + 4096
L_CS = L_ID + 2048
L_SX = L_CS + 6144
L_END = L_SX + 1024
L_STG = L_WQ
assert L_END == 163840
SEG_OFF = {"k": 1024, "v": 2048, "q": 0}
SEG_LDS = {"k": L_WK, "v": L_WV, "q": L_WQ}
SEG_IDX = {"k": 0, "v": 1, "q": 2}

sWA, sWB, sWS, sOUT, sDBG, sX0, sT0, sT1 = 32, 36, 40, 44, 48, 52, 56, 60


def srd(n):
    return f"s[{n}:{n + 3}]"


sR, sG, sW, sFAST, sBUD, sXCC = 64, 65, 66, 67, 68, 69
sXin = 70
sOst = 71
sOld = 72
sXst = 73
sKVp = 74
sKVc = 75
sSTp = 76
sSTc = 77
sF2p, sF3p = 78, 79
sWdma = 80
sWlds = 81
sONES = 83
sWOT = 82
sA, sB, sC, sD = 84, 85, 86, 87
sE, sF = 88, 89
sTM = 90
sEX = 92
sBW, sBO = 94, 95
sXO = 96

vTID = 0
vL16, vOrd, vWtr, vWtrq, vWdma = 1, 2, 3, 4, 5
vPKw0, vPKw1, vVw, vPKr, vVr = 6, 7, 8, 9, 10
vKVst, vZst, vKVld, vZld, vKVw, vZw, vKVr = 11, 12, 13, 14, 15, 16, 17
vFl2, vFl3, vL4, vRdy = 18, 19, 20, 21
vL4c = 22
vSTAMP = 23
RES = 24
ACC0 = 40
ACC1 = 56
RING = 72
P0, P1 = 72, 88
T = 104
XF = 128


def vr(b, n):
    return f"v[{b}:{b + n - 1}]"


def ar(b, n):
    return f"a[{b}:{b + n - 1}]"


a = Asm()
nstamp = [0]


def stamp(name):
    if not STAMP:
        return
    i = nstamp[0]
    nstamp[0] += 1
    assert i < 64
    a.wait(lg=0)
    a(f"s_memtime s[{sTM}:{sTM + 1}]")
    a("s_waitcnt lgkmcnt(0)")
    a(f"v_writelane_b32 v{vSTAMP}, s{sTM}, {i}")
    stamp_names.append(name)


stamp_names = []


def mk_srd(n, ptr, size):
    a(f"s_mov_b32 s{n}, s{ptr}")
    a(f"s_mov_b32 s{n + 1}, s{ptr + 1}")
    a(f"s_mov_b32 s{n + 2}, {hex(size)}")
    a(f"s_mov_b32 s{n + 3}, 0x20000")


def budget_check():
    a(f"s_sub_u32 s{sBUD}, s{sBUD}, 1")
    a("s_cbranch_scc1 L_end")


def dual_store(lines):
    l1, l2 = a.label("Lslow"), a.label("Ljoin")
    a(f"s_cmp_eq_u32 s{sFAST}, 0")
    a(f"s_cbranch_scc1 {l1}")
    for t in lines:
        a(t)
    a(f"s_branch {l2}")
    a(f"{l1}:")
    for t in lines:
        a(t + (" sc1" if t.startswith("buffer_") else ""))
    a(f"{l2}:")


def w_dma(Wsrd, seg, j):
    g = []
    for i in range(2):
        pre = [f"s_add_u32 m0, s{sWlds}, {SEG_LDS[seg] + j * 8192 + i * 1024}",
               f"s_add_u32 s{sBW}, s{sWdma}, {SEG_OFF[seg] + (j * 8 + i) * 49152}"]
        g.append((pre, f"buffer_load_dwordx4 v{vWdma}, {srd(Wsrd)}, s{sBW} offen lds"))
    return g


class BG:
    def __init__(self):
        self.q = []
        self.skip = 0

    def add(self, fn, weight=1):
        self.q.append((weight, fn))

    def slot(self):
        if self.skip:
            self.skip -= 1
            return
        if self.q:
            w, fn = self.q.pop(0)
            fn()
            self.skip = w - 1

    def flush(self):
        while self.q:
            self.q.pop(0)[1]()
        self.skip = 0


bgv = BG()
bgl = BG()
clk = [0, 0]


def paced(lines, pv=64, pl=48):
    for t in lines:
        a(t)
        c = 8 if t.startswith(("v_exp", "v_rcp", "v_rsq")) else 4
        clk[0] += c
        clk[1] += c
        if clk[0] >= pv:
            clk[0] = 0
            bgv.slot()
        if clk[1] >= pl:
            clk[1] = 0
            bgl.slot()


def emit_dma(grp, tag):
    pre, ld = grp
    for t in pre:
        a(t)
    a.vm(ld, tag)


def w_read(seg, ks, slot, tag):
    base = vWtrq if seg == "q" else vWtr
    off = (SEG_LDS[seg] & 0xffff) + ks * 1024
    a.ds(f"ds_read_b64_tr_b16 {vr(slot, 2)}, v{base} offset:{off}", tag)
    a.ds(f"ds_read_b64_tr_b16 {vr(slot + 2, 2)}, v{base} offset:{off + 256}", tag)


def colsum_setup():
    PAR = T + 12
    a(f"v_lshrrev_b32 v{PAR}, 2, v{vTID}")
    a(f"v_lshrrev_b32 v{PAR + 1}, 4, v{vTID}")
    a(f"v_xor_b32 v{PAR}, v{PAR}, v{PAR + 1}")
    a(f"v_and_b32 v{PAR}, 1, v{PAR}")
    a(f"v_subrev_u32 v{PAR}, 1, v{PAR}")
    a(f"v_and_b32 v{PAR}, 0x3f803f80, v{PAR}")
    for i in range(1, 4):
        a(f"v_mov_b32 v{PAR + i}, v{PAR}")
    a(f"v_add_u32 v{T + 16}, s{sWlds}, v{vWtr}")
    a(f"v_add_u32 v{T + 17}, s{sWlds}, v{vWtrq}")


def colsum(pairs):
    PAR = T + 12
    tiles = [(seg, j, i) for seg, j in pairs for i in range(2)]

    def rd(n):
        seg, j, i = tiles[n]
        base = T + 17 if seg == "q" else T + 16
        off = (SEG_LDS[seg] & 0xffff) + j * 8192 + i * 1024
        slot = RING + (n % 8) * 4
        a.ds(f"ds_read_b64_tr_b16 {vr(slot, 2)}, v{base} offset:{off}", f"cs{n}")
        a.ds(f"ds_read_b64_tr_b16 {vr(slot + 2, 2)}, v{base} offset:{off + 256}", f"cs{n}")
    for n in range(min(6, len(tiles))):
        rd(n)
    for n, (seg, j, i) in enumerate(tiles):
        a.wait(lg=f"cs{n}")
        acc = T + SEG_IDX[seg] * 4
        init = j == 0 and i == 0
        a(f"v_mfma_f32_16x16x32_bf16 {vr(acc, 4)}, {vr(PAR, 4)}, {vr(RING + (n % 8) * 4, 4)}, {'0' if init else vr(acc, 4)}")
        if n + 6 < len(tiles):
            rd(n + 6)


def colsum_write(segs, st):
    a(f"s_lshl_b32 s{sA}, s{sW}, 8")
    a(f"v_add_u32 v{T + 16}, s{sA}, v{vL4c}")
    for seg in segs:
        a.ds(f"ds_write_b32 v{T + 16}, v{T + SEG_IDX[seg] * 4} offset:{(st * 3 + SEG_IDX[seg]) * 1024}")


def cs_frag_read(seg, st, dst, tag):
    o = (st * 3 + SEG_IDX[seg]) * 4
    a.ds(f"ds_read2st64_b32 {vr(dst, 2)}, v{vL4c} offset0:{o} offset1:{o + 1}", tag)
    a.ds(f"ds_read2st64_b32 {vr(dst + 2, 2)}, v{vL4c} offset0:{o + 2} offset1:{o + 3}", tag)


def cs_frag_ops(dst):
    return [
        f"v_add_f32 v{dst}, v{dst}, v{dst + 1}",
        f"v_add_f32 v{dst + 2}, v{dst + 2}, v{dst + 3}",
        f"v_add_f32 v{dst + 2}, v{dst}, v{dst + 2}",
        f"v_cvt_pk_bf16_f32 v{dst}, v{dst + 2}, v{dst + 2}",
        f"v_and_b32 v{dst + 3}, 0xffff0000, v{dst}",
        f"v_sub_f32 v{dst + 3}, v{dst + 2}, v{dst + 3}",
        f"v_cvt_pk_bf16_f32 v{dst + 1}, v{dst + 3}, 0",
    ]


def stats_partial():
    s1, s2 = T, T + 2
    a(f"v_pk_add_f32 {vr(s1, 2)}, {vr(RES, 2)}, {vr(RES + 2, 2)}")
    a(f"v_pk_mul_f32 {vr(s2, 2)}, {vr(RES, 2)}, {vr(RES, 2)}")
    a(f"v_pk_fma_f32 {vr(s2, 2)}, {vr(RES + 2, 2)}, {vr(RES + 2, 2)}, {vr(s2, 2)}")
    for i in range(2, 8):
        x = vr(RES + 2 * i, 2)
        a(f"v_pk_add_f32 {vr(s1, 2)}, {vr(s1, 2)}, {x}")
        a(f"v_pk_fma_f32 {vr(s2, 2)}, {x}, {x}, {vr(s2, 2)}")
    a(f"v_add_f32 v{s1}, v{s1}, v{s1 + 1}")
    a(f"v_add_f32 v{s2}, v{s2}, v{s2 + 1}")
    a(f"s_lshl_b32 s{sA}, s{sW}, 8")
    a(f"v_add_u32 v{T + 4}, s{sA}, v{vL4c}")
    a(f"v_permlane32_swap_b32 v{s1}, v{s2}")
    a(f"v_add_f32 v{s1}, v{s1}, v{s2}")
    a.ds(f"ds_write_b32 v{T + 4}, v{s1} offset:{L_SX - L_CS}")


def stats_publish(layer, force_sc1):
    lab = a.label("Lst")
    a(f"s_cmp_lg_u32 s{sW}, 0")
    a(f"s_cbranch_scc1 {lab}")
    o = (L_SX - L_CS) // 256
    a(f"ds_read2st64_b32 {vr(T, 2)}, v{vL4c} offset0:{o} offset1:{o + 1}")
    a(f"ds_read2st64_b32 {vr(T + 2, 2)}, v{vL4c} offset0:{o + 2} offset1:{o + 3}")
    a("s_waitcnt lgkmcnt(0)")
    a(f"v_add_f32 v{T}, v{T}, v{T + 1}")
    a(f"v_add_f32 v{T + 2}, v{T + 2}, v{T + 3}")
    a(f"v_add_f32 v{T}, v{T}, v{T + 2}")
    st = f"buffer_store_dword v{T}, v{vL4}, {srd(sWS)}, s{sSTp} offen offset:{layer * 256}"
    if force_sc1:
        a(st + " sc1")
    else:
        dual_store([st])
    a(f"{lab}:")


ST = T + 8
MEANB = T + 12
SCL = T + 14
RSTD = T + 16
CSK, CSV = T, T + 4
WPH = T + 0
KP = T + 8


def stats_loads(layer):
    for c in range(4):
        a.vm(f"buffer_load_dword v{ST + c}, v{vL4}, {srd(sWS)}, s{sSTc} offen offset:{c * 1024 + layer * 256} sc1", "st")


def stats_check(layer):
    ok, again = a.label("Lstok"), a.label("Lstre")
    a(f"{again}:")
    a(f"v_max3_u32 v{RSTD}, v{ST}, v{ST + 1}, v{ST + 2}")
    a(f"v_max_u32 v{RSTD}, v{RSTD}, v{ST + 3}")
    a(f"v_cmp_eq_u32 vcc, -1, v{RSTD}")
    a(f"s_cbranch_vccz {ok}")
    budget_check()
    for c in range(4):
        a(f"buffer_load_dword v{ST + c}, v{vL4}, {srd(sWS)}, s{sSTc} offen offset:{c * 1024 + layer * 256} sc1")
    a("s_waitcnt vmcnt(0)")
    a(f"s_branch {again}")
    a(f"{ok}:")


def stats_ops():
    s = ST
    return [
        f"v_add_f32 v{s}, v{s}, v{s + 1}",
        f"v_add_f32 v{s + 2}, v{s + 2}, v{s + 3}",
        f"v_add_f32 v{s}, v{s}, v{s + 2}",
        f"v_mul_f32 v{s}, 0x3b000000, v{s}",
        f"v_mov_b32 v{s + 1}, v{s}",
        f"v_cmp_gt_u32 vcc, 32, v{vTID}",
        f"v_permlane32_swap_b32 v{s}, v{s + 1}",
        f"v_fma_f32 v{s + 1}, -v{s}, v{s}, v{s + 1}",
        f"v_cndmask_b32 v{s}, 0, v{s}, vcc",
        f"v_max_f32 v{s + 1}, 0, v{s + 1}",
        f"v_add_f32 v{s + 1}, 0x3727c5ac, v{s + 1}",
        f"v_rsq_f32 v{RSTD}, v{s + 1}",
        f"v_cvt_pk_bf16_f32 v{MEANB + 1}, -v{s}, 0",
        f"v_lshlrev_b32 v{s + 2}, 16, v{MEANB + 1}",
        f"v_sub_f32 v{s + 2}, -v{s}, v{s + 2}",
        f"v_cvt_pk_bf16_f32 v{MEANB}, -v{s}, v{s + 2}",
        f"v_mul_f32 v{SCL}, 0x3fb8aa3b, v{RSTD}",
    ]


def softmax(P):
    mx, sm, sm2 = T + 18, T + 20, T + 22
    o = []
    o.append(f"v_max3_f32 v{mx}, v{P}, v{P + 1}, v{P + 2}")
    o.append(f"v_max3_f32 v{mx + 1}, v{P + 3}, v{P + 4}, v{P + 5}")
    o.append(f"v_max3_f32 v{mx}, v{mx}, v{P + 6}, v{P + 7}")
    o.append(f"v_max3_f32 v{mx + 1}, v{mx + 1}, v{P + 8}, v{P + 9}")
    o.append(f"v_max3_f32 v{mx}, v{mx}, v{P + 10}, v{P + 11}")
    o.append(f"v_max3_f32 v{mx + 1}, v{mx + 1}, v{P + 12}, v{P + 13}")
    o.append(f"v_max3_f32 v{mx}, v{mx}, v{P + 14}, v{P + 15}")
    o.append(f"v_max_f32 v{mx}, v{mx}, v{mx + 1}")
    o.append(f"v_mul_f32 v{SCL + 1}, -v{mx}, v{SCL}")
    for i in range(8):
        x = vr(P + 2 * i, 2)
        o.append(f"v_pk_fma_f32 {x}, {x}, {vr(SCL, 2)}, {vr(SCL, 2)} op_sel:[0,0,1] op_sel_hi:[1,0,1]")
    for i in range(16):
        o.append(f"v_exp_f32 v{P + i}, v{P + i}")
    o.append(f"v_pk_add_f32 {vr(sm, 2)}, {vr(P, 2)}, {vr(P + 2, 2)}")
    o.append(f"v_pk_add_f32 {vr(sm2, 2)}, {vr(P + 4, 2)}, {vr(P + 6, 2)}")
    o.append(f"v_pk_add_f32 {vr(sm, 2)}, {vr(sm, 2)}, {vr(P + 8, 2)}")
    o.append(f"v_pk_add_f32 {vr(sm2, 2)}, {vr(sm2, 2)}, {vr(P + 10, 2)}")
    o.append(f"v_pk_add_f32 {vr(sm, 2)}, {vr(sm, 2)}, {vr(P + 12, 2)}")
    o.append(f"v_pk_add_f32 {vr(sm2, 2)}, {vr(sm2, 2)}, {vr(P + 14, 2)}")
    o.append(f"v_pk_add_f32 {vr(sm, 2)}, {vr(sm, 2)}, {vr(sm2, 2)}")
    o.append(f"v_add_f32 v{sm}, v{sm}, v{sm + 1}")
    o.append(f"v_rcp_f32 v{sm}, v{sm}")
    for i in range(8):
        x = vr(P + 2 * i, 2)
        o.append(f"v_pk_mul_f32 {x}, {x}, {vr(sm, 2)} op_sel_hi:[1,0]")
    for i in range(8):
        o.append(f"v_cvt_pk_bf16_f32 v{P + i}, v{P + 2 * i}, v{P + 2 * i + 1}")
    return o


def poll_flag(vaddr, value):
    lab = a.label("Lpoll")
    a(f"{lab}:")
    budget_check()
    a(f"buffer_load_dword v{T + 23}, v{vaddr}, {srd(sWS)}, 0 offen sc1")
    a.wait(vm=0)
    a(f"v_cmp_gt_u32 vcc, {value}, v{T + 23}")
    a(f"s_cbranch_vccnz {lab}")


MF32 = "v_mfma_f32_32x32x16_bf16"
MF16 = "v_mfma_f32_16x16x32_bf16"
MF8 = "v_mfma_f32_32x32x8_bf16"


def opt(name, default):
    for x in sys.argv:
        if x.startswith(f"--{name}="):
            return int(x.split("=")[1])
    return default


NX = opt("nx", 6)
PARTPOS = opt("partpos", 17)
WO_EARLY = opt("woearly", 20)
RDYJ = 2
CO = L_KV - L_R


def prologue():
    a("s_cmp_ge_u32 s2, 0x100")
    a("s_cbranch_scc1 L_end")
    a("s_load_dwordx16 s[8:23], s[0:1], 0")
    a("s_load_dwordx4 s[24:27], s[0:1], 64")
    a("s_load_dwordx2 s[28:29], s[0:1], 80")
    if "--spin" in sys.argv:
        a("s_memrealtime s[98:99]")
    if STAMP:
        a(f"s_memtime s[{sTM}:{sTM + 1}]")
    a("s_getpc_b64 s[4:5]")
    a("L_pc:")
    U = XF + 96
    JUNK = 255
    a.c("pull this kernel's code into L2: workgroup i = id>>3 touches 2KB of it")
    a("s_lshr_b32 s3, s2, 3")
    a("s_lshl_b32 s6, s3, 5")
    a("v_lshrrev_b32 v1, 3, v0")
    a("v_add_lshl_u32 v1, v1, s6, 6")
    a("v_min_u32 v1, L_end-L_pc, v1")
    a.vm(f"global_load_dword v{JUNK}, v1, s[4:5]", "code")
    a("v_lshrrev_b32 v2, 6, v0")
    vT128 = U + 13
    a(f"v_lshlrev_b32 v{vT128}, 7, v0")
    a(f"v_and_b32 v{vTID}, 63, v0")
    a(f"v_readfirstlane_b32 s{sW}, v2")
    a("s_and_b32 s6, s2, 7")
    a("s_lshl_b32 s6, s6, 1")
    a("s_lshr_b32 s7, s3, 4")
    a(f"s_add_u32 s{sR}, s6, s7")
    a(f"s_and_b32 s{sG}, s3, 15")
    l = vTID
    t0, t1, t2, t3 = U, U + 1, U + 2, U + 3
    a(f"v_lshlrev_b32 v{vL16}, 4, v{l}")
    a(f"v_lshrrev_b32 v{t0}, 2, v{l}")
    a(f"v_and_b32 v{t1}, 3, v{l}")
    a(f"v_lshlrev_b32 v{t1}, 4, v{t1}")
    a(f"v_mul_u32_u24 v{vWdma}, 0xc00, v{t0}")
    a(f"v_add_u32 v{vWdma}, v{vWdma}, v{t1}")
    vWOdma = U + 4
    a(f"v_lshl_add_u32 v{vWOdma}, v{t0}, 10, v{t1}")
    vXe, vXo = T + 18, T + 19
    a(f"v_lshrrev_b32 v{t0}, 3, v{l}")
    a(f"v_lshrrev_b32 v{t1}, 4, v{l}")
    a(f"v_xor_b32 v{t1}, v{t1}, v{l}")
    a(f"v_and_b32 v{t1}, 7, v{t1}")
    a(f"v_lshlrev_b32 v{t1}, 4, v{t1}")
    a(f"v_lshl_add_u32 v{vXe}, v{t0}, 10, v{t1}")
    a(f"v_xor_b32 v{vXo}, 64, v{vXe}")
    vRes = U + 7
    a(f"v_and_b32 v{t0}, 31, v{l}")
    a(f"v_lshrrev_b32 v{t1}, 5, v{l}")
    a(f"v_lshlrev_b32 v{t1}, 4, v{t1}")
    a(f"v_lshl_add_u32 v{vRes}, v{t0}, 10, v{t1}")
    a(f"s_lshl_b32 s{sA}, s{sR}, 17")
    a(f"s_lshl_b32 s{sB}, s{sW}, 15")
    a(f"s_add_u32 s{sXin}, s{sA}, s{sB}")
    a(f"s_lshr_b32 s{sB}, s{sG}, 2")
    a(f"s_lshl_b32 s{sB}, s{sB}, 15")
    a(f"s_add_u32 s{sA}, s{sA}, s{sB}")
    a(f"s_lshl_b32 s{sB}, s{sW}, 13")
    a(f"s_add_u32 s{sOld}, s{sA}, s{sB}")
    a(f"s_and_b32 s{sC}, s{sG}, 3")
    a(f"s_lshl_b32 s{sC}, s{sC}, 2")
    a(f"s_add_u32 s{sC}, s{sC}, s{sW}")
    a(f"s_lshl_b32 s{sB}, s{sC}, 11")
    a(f"s_add_u32 s{sXst}, s{sA}, s{sB}")
    a(f"s_lshl_b32 s{sB}, s{sC}, 6")
    a(f"s_add_u32 s{sF}, s{sA}, s{sB}")
    a(f"s_mul_i32 s{sB}, s{sG}, {KV_G}")
    a(f"s_add_u32 s{sKVc}, s{sB}, {hex(WS_KV)}")
    a(f"s_mul_i32 s{sB}, s{sR}, {KV_R}")
    a(f"s_add_u32 s{sKVp}, s{sKVc}, s{sB}")
    a(f"s_lshl_b32 s{sA}, s{sR}, 14")
    a(f"s_lshl_b32 s{sB}, s{sG}, 10")
    a(f"s_add_u32 s{sB}, s{sA}, s{sB}")
    a(f"s_add_u32 s{sSTp}, s{sB}, {hex(WS_ST)}")
    a(f"s_add_u32 s{sE}, s{sB}, {hex(WS_FL)}")
    a(f"s_lshl_b32 s{sWlds}, s{sW}, 11")
    a(f"s_mul_i32 s{sB}, s{sW}, {2 * 49152}")
    a(f"s_lshl_b32 s{sD}, s{sG}, 6")
    a(f"s_add_u32 s{sWdma}, s{sB}, s{sD}")
    a(f"s_add_u32 s{sA}, s{sKVp}, 8192")
    a(f"s_cmp_eq_u32 s{sW}, 0")
    a(f"s_cselect_b32 s{sA}, s{sA}, s{sSTp}")
    a(f"s_cmp_lt_u32 s{sW}, 2")
    a(f"s_cselect_b32 s{sE}, s{sA}, s{sE}")
    a(f"s_cselect_b32 s{sA}, -1, 0")
    for i in range(4):
        a(f"v_mov_b32 v{ACC0 + i}, -1")
        a(f"v_mov_b32 v{ACC0 + 4 + i}, s{sA}")
    a(f"v_mov_b32 v{ACC0 + 8}, 0")
    a(f"s_lshl_b32 s{sB}, s{sW}, 10")
    a(f"s_add_u32 s{sB}, s{sKVp}, s{sB}")
    a(f"s_add_u32 s{sD}, s{sB}, 4096")
    a("s_lshl_b32 s6, s2, 2")
    a(f"s_add_u32 s6, s6, s{sW}")
    a("s_bfe_u32 s7, s6, 0x50004")
    a("s_and_b32 s3, s6, 15")
    a("s_lshl_b32 s30, s7, 14")
    a("s_lshl_b32 s31, s3, 6")
    a("s_add_u32 s30, s30, s31")
    a(f"s_add_u32 s31, s{sWlds}, {L_STG}")
    a(f"s_lshl_b32 s{sXO}, s{sW}, 12")
    a(f"s_add_u32 s{sXO}, s{sXO}, {L_R}")
    a.wait(lg=0)
    if STAMP:
        a(f"v_mov_b32 v{vSTAMP}, 0")
        a(f"v_writelane_b32 v{vSTAMP}, s{sTM}, 0")
        nstamp[0] = 1
        stamp_names.append("start")
    stamp("karg")
    mk_srd(sX0, 8, 0x200000)

    def x_group(m):
        a(f"s_add_u32 m0, s{sXO}, {((m + 1) % 3) * 16384}")
        for p in range(4):
            a(f"s_add_u32 s{sA}, s{sXin}, {p * 7168 + m * 128}")
            a.vm(f"buffer_load_dwordx4 v{vXo if p & 1 else vXe}, {srd(sX0)}, s{sA} offen offset:{p * 1024} lds", f"xg{m}")

    def w_quarter(j):
        for seg in "kv":
            for grp in w_dma(sWA, seg, j):
                emit_dma(grp, f"wq{j}")
    a("s_cmp_lt_u32 s2, 0x80")
    a(f"s_cselect_b32 s{sT0}, s14, s22")
    a(f"s_cselect_b32 s{sT0 + 1}, s15, s23")
    a(f"s_mov_b32 s{sT0 + 2}, 0x80000")
    a(f"s_mov_b32 s{sT0 + 3}, 0x20000")
    a("s_mov_b32 m0, s31")
    mk_srd(sWS, 28, WS_SIZE)
    a.vm(f"buffer_load_dwordx4 v{vWOdma}, {srd(sT0)}, s30 offen lds", "wo")
    a.c("workgroup 0 clears the ready words")
    lab = a.label("Lld")
    a("s_cmp_lg_u32 s2, 0")
    a(f"s_cbranch_scc1 {lab}")
    a(f"s_mov_b32 s{sA}, {hex(WS_RDY)}")
    a(f"buffer_store_dword v{ACC0 + 8}, v{vT128}, {srd(sWS)}, s{sA} offen sc1")
    a(f"{lab}:")
    a.vm(f"buffer_store_dwordx4 {vr(ACC0, 4)}, v{vL16}, {srd(sWS)}, s{sB} offen sc1", "init")
    a.vm(f"buffer_store_dwordx4 {vr(ACC0, 4)}, v{vL16}, {srd(sWS)}, s{sD} offen sc1", "init")
    a.vm(f"buffer_store_dwordx4 {vr(ACC0 + 4, 4)}, v{vL16}, {srd(sWS)}, s{sE} offen sc1", "init")
    if "--probe" in sys.argv:
        a.wait(vm="code")
        stamp("p_code")
        a("s_waitcnt vmcnt(3)")
        stamp("p_wo")
        a("s_waitcnt vmcnt(0)")
        stamp("p_init")
    stamp("i_init")
    x_group(0)
    mk_srd(sWA, 10, 0x180000)
    x_group(1)
    stamp("i_x01")
    w_quarter(0)
    stamp("i_w0")
    a(f"s_cmp_lt_u32 s{sW}, 2")
    a(f"s_cselect_b32 s{sT1}, s12, s20")
    a(f"s_cselect_b32 s{sT1 + 1}, s13, s21")
    a(f"s_mov_b32 s{sT1 + 2}, 0x4000")
    a(f"s_mov_b32 s{sT1 + 3}, 0x20000")
    a("s_add_u32 m0, s31, 1024")
    a(f"s_lshl_b32 s{sA}, s{sG}, 10")
    a.vm(f"buffer_load_dwordx4 v{vL16}, {srd(sT1)}, s{sA} offen lds", "wphi")
    a.vm(f"buffer_load_dwordx4 {vr(U + 16, 4)}, v{vRes}, {srd(sX0)}, s{sF} offen", "res")
    a.vm(f"buffer_load_dwordx4 {vr(U + 20, 4)}, v{vRes}, {srd(sX0)}, s{sF} offen offset:32", "res")
    mk_srd(sWB, 18, 0x180000)
    mk_srd(sOUT, 24, 0x200000)
    mk_srd(sDBG, 26, 0x100)
    if "--notouch" not in sys.argv:
        a.c("first touches: this workgroup's 1/256 share of W_B, and the pages of the hand-off buffers")
        a("s_mul_i32 s30, s6, 1536")
        a(f"v_and_b32 v{t0}, 0x780, v{vT128}")
        a(f"v_min_u32 v{t0}, 0x580, v{t0}")
        a.vm(f"buffer_load_dword v{JUNK}, v{t0}, {srd(sWB)}, s30 offen", "touch")
        a(f"s_lshl_b32 s{sB}, s{sG}, 11")
        a(f"s_add_u32 s{sOst}, s{sXin}, s{sB}")
        if "--touchA" in sys.argv:
            a(f"v_and_b32 v{t1}, 7, v{l}")
            a(f"v_lshlrev_b32 v{t1}, 12, v{t1}")
            a.vm(f"buffer_load_dword v{JUNK}, v{t1}, {srd(sOUT)}, s{sXin} offen", "touch")
            a(f"v_and_b32 v{t1}, 0x1000, v{t1}")
            a.vm(f"buffer_load_dword v{JUNK}, v{t1}, {srd(sWS)}, s{sOld} offen", "touch")
        elif "--touchB" in sys.argv:
            a(f"v_and_b32 v{t1}, 0x780, v{vT128}")
            a.vm(f"buffer_load_dword v{JUNK}, v{t1}, {srd(sOUT)}, s{sXst} offen", "touch")
            a.vm(f"buffer_load_dword v{JUNK}, v{t1}, {srd(sWS)}, s{sOst} offen", "touch")
        else:
            a.vm(f"buffer_load_dword v{JUNK}, off, {srd(sOUT)}, s{sXst}", "touch")
            a.vm(f"buffer_load_dword v{JUNK}, off, {srd(sWS)}, s{sOld}", "touch")
    stamp("i_tch")
    x_group(2)
    stamp("i_x2")
    a("s_lshr_b32 s6, s6, 9")
    a("s_lshl_b32 s6, s6, 19")
    a("s_lshl_b32 s3, s3, 15")
    a("s_lshl_b32 s7, s7, 10")
    a("s_add_u32 s6, s6, s3")
    a("s_add_u32 s6, s6, s7")
    a(f"s_add_u32 s6, s6, {hex(WS_WOT)}")
    a(f"s_getreg_b32 s{sXCC}, hwreg(HW_REG_XCC_ID, 0, 4)")
    a(f"s_mov_b32 s{sBUD}, 0x40000")
    a(f"s_mov_b32 s{sFAST}, 0")
    a(f"s_mov_b32 s{sONES}, 0x3f803f80")
    a(f"v_lshlrev_b32 v{vL4}, 2, v{l}")
    a(f"s_lshl_b32 s{sB}, s{sG}, 11")
    a(f"s_add_u32 s{sOst}, s{sXin}, s{sB}")
    a(f"s_lshl_b32 s{sB}, s{sC}, 15")
    a(f"s_add_u32 s{sWOT}, s{sB}, {hex(WS_WOT)}")
    a(f"s_lshl_b32 s{sA}, s{sR}, 14")
    a(f"s_lshl_b32 s{sB}, s{sW}, 12")
    a(f"s_add_u32 s{sB}, s{sA}, s{sB}")
    a(f"s_add_u32 s{sSTc}, s{sB}, {hex(WS_ST)}")
    a(f"s_add_u32 s{sA}, s{sA}, {hex(WS_FL)}")
    a(f"s_add_u32 s{sB}, s{sA}, s{sWlds}")
    a(f"s_lshl_b32 s{sD}, s{sG}, 2")
    a(f"s_add_u32 s{sF2p}, s{sB}, s{sD}")
    a(f"v_and_b32 v{t0}, 15, v{l}")
    a(f"s_add_u32 s{sB}, s{sB}, 1024")
    a(f"v_lshl_add_u32 v{vFl3}, v{t0}, 2, s{sB}")
    a(f"s_lshr_b32 s{sB}, s{sG}, 2")
    a(f"s_lshl_b32 s{sB}, s{sB}, 11")
    a(f"s_add_u32 s{sB}, s{sA}, s{sB}")
    a(f"s_lshl_b32 s{sD}, s{sC}, 2")
    a(f"s_add_u32 s{sF3p}, s{sB}, s{sD}")
    a(f"s_add_u32 s{sF3p}, s{sF3p}, 1024")
    a(f"s_lshl_b32 s{sD}, s{sW}, 4")
    a(f"s_add_u32 s{sB}, s{sB}, s{sD}")
    a(f"v_and_b32 v{t0}, 3, v{l}")
    a(f"v_lshl_add_u32 v{vFl2}, v{t0}, 2, s{sB}")
    q, rr, cc = U + 8, U + 9, U + 10
    a(f"v_lshrrev_b32 v{q}, 4, v{l}")
    a(f"v_bfe_u32 v{rr}, v{l}, 2, 2")
    a(f"v_and_b32 v{cc}, 3, v{l}")
    a(f"v_lshrrev_b32 v{t0}, 5, v{l}")
    a(f"v_lshl_add_u32 v{t0}, v{t0}, 3, v{rr}")
    a(f"v_lshlrev_b32 v{vWtr}, 6, v{t0}")
    a(f"v_and_b32 v{t1}, 1, v{q}")
    a(f"v_lshl_add_u32 v{vWtr}, v{t1}, 5, v{vWtr}")
    a(f"v_and_b32 v{t2}, 1, v{cc}")
    a(f"v_lshl_add_u32 v{vWtr}, v{t2}, 4, v{vWtr}")
    a(f"v_lshrrev_b32 v{t3}, 1, v{cc}")
    a(f"v_lshl_add_u32 v{vWtr}, v{t3}, 3, v{vWtr}")
    a(f"v_add_u32 v{vWtrq}, {hex(L_WQ)}, v{vWtr}")
    vPhi = U + 11
    a(f"v_lshl_add_u32 v{vPhi}, v{t1}, 1, v{t3}")
    a(f"v_lshlrev_b32 v{vPhi}, 3, v{vPhi}")
    a(f"v_lshl_add_u32 v{vPhi}, v{t0}, 5, v{vPhi}")
    a(f"s_and_b32 s{sA}, s{sW}, 1")
    a(f"s_lshl_b32 s{sA}, s{sA}, 9")
    a(f"s_add_u32 s{sA}, s{sA}, s31")
    a(f"v_add_u32 v{vPhi}, s{sA}, v{vPhi}")
    vWoR = U + 12
    a(f"v_add_u32 v{vWoR}, s31, v{vWtr}")
    a(f"v_lshl_add_u32 v{t0}, v{q}, 2, v{rr}")
    a(f"v_xor_b32 v{t3}, v{t3}, v{t1}")
    a(f"v_lshlrev_b32 v{t3}, 4, v{t3}")
    a(f"v_lshl_add_u32 v{t3}, v{t2}, 3, v{t3}")
    a(f"v_lshl_add_u32 v{t0}, v{t0}, 5, v{t3}")
    a(f"s_lshl_b32 s{sA}, s{sW}, 12")
    a(f"s_add_u32 s{sA}, s{sA}, {L_R}")
    a(f"v_add_u32 v{vPKr}, s{sA}, v{t0}")
    a(f"s_lshr_b32 s{sA}, s{sW}, 1")
    a(f"s_lshl_b32 s{sA}, s{sA}, 12")
    a(f"s_add_u32 s{sA}, s{sA}, {L_V}")
    a(f"v_add_u32 v{vVr}, s{sA}, v{t0}")
    a(f"v_and_b32 v{t0}, 31, v{l}")
    a(f"v_lshlrev_b32 v{t0}, 5, v{t0}")
    a(f"s_lshl_b32 s{sA}, s{sW}, 10")
    a(f"s_add_u32 s{sA}, s{sA}, {L_R}")
    a(f"v_add_u32 v{t0}, s{sA}, v{t0}")
    a(f"v_lshrrev_b32 v{t1}, 5, v{l}")
    a(f"v_and_b32 v{t2}, 1, v{rr}")
    a(f"v_lshl_add_u32 v{vPKw0}, v{t1}, 12, v{t0}")
    a(f"v_lshl_add_u32 v{vPKw0}, v{t2}, 4, v{vPKw0}")
    a(f"v_xor_b32 v{vPKw1}, 16, v{vPKw0}")
    a(f"v_xor_b32 v{t2}, v{t2}, v{t1}")
    a(f"v_lshl_add_u32 v{vVw}, v{t2}, 4, v{t0}")
    a(f"v_add_u32 v{vVw}, 0x4000, v{vVw}")
    a(f"v_and_b32 v{t0}, 15, v{l}")
    a(f"s_lshl_b32 s{sA}, s{sW}, 9")
    a(f"s_lshl_b32 s{sB}, s{sW}, 5")
    a(f"s_add_u32 s{sB}, s{sB}, 2048")
    a(f"v_lshl_add_u32 v{vKVst}, v{q}, 3, s{sA}")
    a(f"v_lshl_add_u32 v{vKVst}, v{t0}, 5, v{vKVst}")
    a(f"v_lshl_add_u32 v{vZst}, v{q}, 3, s{sB}")
    a(f"v_mul_u32_u24 v{t1}, {hex(KV_R)}, v{q}")
    a(f"v_lshl_add_u32 v{vKVld}, v{t0}, 4, v{t1}")
    a(f"v_add_u32 v{vKVld}, s{sA}, v{vKVld}")
    a(f"v_and_b32 v{t2}, 1, v{l}")
    a(f"v_lshl_add_u32 v{vZld}, v{t2}, 4, v{t1}")
    a(f"v_add_u32 v{vZld}, s{sB}, v{vZld}")
    a(f"s_lshr_b32 s{sA}, s{sW}, 1")
    a(f"s_mul_i32 s{sA}, s{sA}, {KVH}")
    a(f"s_and_b32 s{sB}, s{sW}, 1")
    a(f"s_lshl_b32 s{sB}, s{sB}, 5")
    a(f"s_add_u32 s{sA}, s{sA}, s{sB}")
    a(f"s_add_u32 s{sA}, s{sA}, {L_KV}")
    a(f"v_and_b32 v{t1}, 1, v{q}")
    a(f"v_lshlrev_b32 v{t1}, 3, v{t1}")
    a(f"v_lshl_add_u32 v{t1}, v{t2}, 4, v{t1}")
    a(f"v_add_u32 v{t1}, s{sA}, v{t1}")
    a(f"v_add_u32 v{vZw}, {16 * KVROW}, v{t1}")
    a(f"v_lshrrev_b32 v{t2}, 1, v{t0}")
    a(f"v_lshrrev_b32 v{t3}, 5, v{l}")
    a(f"v_lshl_add_u32 v{t2}, v{t3}, 3, v{t2}")
    a(f"v_mul_u32_u24 v{t2}, {KVROW}, v{t2}")
    a(f"v_add_u32 v{vKVw}, v{t1}, v{t2}")
    a(f"v_and_b32 v{t0}, 1, v{rr}")
    a(f"v_lshl_add_u32 v{t0}, v{t0}, 3, v{cc}")
    a(f"v_bfe_u32 v{t1}, v{l}, 3, 1")
    a(f"v_lshl_add_u32 v{t0}, v{t1}, 2, v{t0}")
    a(f"v_and_b32 v{t1}, 16, v{l}")
    a(f"v_cmp_eq_u32 vcc, 0, v{t1}")
    a(f"v_add_u32 v{vOrd}, {hex(L_R)}, v{vL16}")
    a(f"v_add_u32 v{vL4c}, {hex(L_CS)}, v{vL4}")
    a(f"v_cndmask_b32 v{t0}, 16, v{t0}, vcc")
    a(f"v_mul_u32_u24 v{t0}, {KVROW}, v{t0}")
    a(f"v_lshl_add_u32 v{t0}, v{t3}, 5, v{t0}")
    a(f"v_add_u32 v{vKVr}, {hex(L_KV)}, v{t0}")
    a(f"v_and_b32 v{t0}, 31, v{l}")
    a(f"v_bfe_u32 v{t1}, v{l}, 1, 3")
    a(f"v_xor_b32 v{t1}, v{t1}, v{t3}")
    a(f"v_lshlrev_b32 v{t1}, 4, v{t1}")
    a(f"v_lshl_add_u32 v{t0}, v{t0}, 7, v{t1}")
    XR = [T + 20, T + 21, T + 22, T + 23]
    a(f"v_add_u32 v{XR[0]}, s{sXO}, v{t0}")
    for u in range(1, 4):
        a(f"v_xor_b32 v{XR[u]}, {u * 32}, v{XR[0]}")
    a(f"s_and_b32 s{sA}, s{sG}, 3")
    a(f"v_lshl_add_u32 v{t0}, v{l}, 2, s{sA}")
    a(f"v_and_b32 v{t1}, 15, v{l}")
    a("s_and_b32 s3, s2, 0x87")
    a(f"v_lshl_add_u32 v{t2}, v{t1}, 3, s3")
    a(f"v_cmp_gt_u32 vcc, 32, v{l}")
    a(f"v_and_b32 v{t3}, 1, v{l}")
    a(f"v_lshrrev_b32 v{t1}, 1, v{t1}")
    a(f"v_cndmask_b32 v{t0}, v{t2}, v{t0}, vcc")
    a(f"v_lshl_add_u32 v{t1}, v{t3}, 7, v{t1}")
    a(f"v_cmp_gt_u32 vcc, 48, v{l}")
    a("s_and_b32 s3, s2, 0x78")
    a(f"v_add_u32 v{t1}, s3, v{t1}")
    a(f"v_cndmask_b32 v{t0}, v{t1}, v{t0}, vcc")
    a(f"v_lshlrev_b32 v{t0}, 7, v{t0}")
    a(f"v_add_u32 v{vRdy}, {hex(WS_RDY)}, v{t0}")
    a(f"v_and_b32 v{t0}, 1, v{l}")
    a(f"v_lshlrev_b32 v{t0}, 4, v{t0}")
    a(f"v_mov_b32 v{t1}, 0x3f80")
    a(f"v_lshlrev_b32 v{t1}, v{t0}, v{t1}")
    a(f"v_bfe_u32 v{t0}, v{l}, 1, 3")
    for i in range(8):
        a(f"v_cmp_eq_u32 vcc, {i}, v{t0}")
        a(f"v_cndmask_b32 v{RING + i}, 0, v{t1}, vcc")
    a.ds(f"ds_write_b128 v{vOrd}, {vr(RING, 4)} offset:{L_ID - L_R}")
    a.ds(f"ds_write_b128 v{vOrd}, {vr(RING + 4, 4)} offset:{L_ID - L_R + 1024}")
    colsum_setup()
    for i in range(4):
        a(f"v_mov_b32 v{ST + i}, 0")
    a(f"v_bfe_u32 v{t0}, v{l}, 2, 1")
    a(f"v_mul_u32_u24 v{t0}, 0x8000, v{t0}")
    a(f"v_lshl_add_u32 v{t0}, v{t0}, 16, v{t0}")
    a(f"s_lshl_b32 s{sA}, s{sW}, 10")
    a(f"v_add_u32 v{t1}, s{sA}, v{vOrd}")
    if "--nowot" in sys.argv:
        for i in range(128):
            a(f"v_accvgpr_write_b32 a{i}, 0")
    stamp("addr")
    a.wait(vm="wo")
    stamp("wo")
    a.ds(f"ds_read_b64_tr_b16 {vr(RING, 2)}, v{vWoR}", "wo")
    a.ds(f"ds_read_b64_tr_b16 {vr(RING + 2, 2)}, v{vWoR} offset:256", "wo")
    a.wait(lg="wo")
    a.vm(f"buffer_store_dwordx4 {vr(RING, 4)}, v{vL16}, {srd(sWS)}, s6 offen sc1", "wot")
    w_quarter(1)

    def x_read(m):
        a.wait(vm=f"xg{m}")
        for u in range(4):
            a.ds(f"ds_read_b128 {vr(XF + (m * 4 + u) * 4, 4)}, v{XR[u]} offset:{((m + 1) % 3) * 16384}")
        a.wait(lg=0)

    def x_stats(m):
        for i in range(16):
            x = XF + m * 16 + i
            a(f"v_dot2c_f32_bf16 v{ST + (i & 1)}, s{sONES}, v{x}")
            a(f"v_dot2c_f32_bf16 v{ST + 2 + (i & 1)}, v{x}, v{x}")

    for j in range(4):
        x_read(2 * j)
        if j == RDYJ - 1:
            a.vm(f"buffer_load_dword v{U + 2}, off, {srd(sDBG)}, 0 sc1", "dbg")
        if 2 * j + 3 < 8:
            x_group(2 * j + 3)
        x_stats(2 * j)
        if j < 3:
            x_read(2 * j + 1)
            if j < 2:
                x_group(2 * j + 4)
                w_quarter(j + 2)
            x_stats(2 * j + 1)
        if j == 0:
            a.wait(vm="res")
            a.ds(f"ds_read_b64_tr_b16 {vr(U + 24, 2)}, v{vPhi} offset:1024", "ph")
            a.ds(f"ds_read_b64_tr_b16 {vr(U + 26, 2)}, v{vPhi} offset:{1024 + 128}", "ph")
            for i in range(8):
                a(f"v_lshlrev_b32 v{RES + 2 * i}, 16, v{U + 16 + i}")
                a(f"v_and_b32 v{RES + 2 * i + 1}, 0xffff0000, v{U + 16 + i}")
            a.wait(lg="ph")
            for i in range(4):
                a(f"v_xor_b32 v{U + 24 + i}, v{t0}, v{U + 24 + i}")
            a.ds(f"ds_write_b128 v{t1}, {vr(U + 24, 4)} offset:{L_WPHI - L_R}")
        a.wait(vm=f"wq{j}")
        stamp(f"w{j}")
        colsum([("k", j), ("v", j)])
        if j == 3:
            colsum_write("kv", 0)
        a.wait(lg=0)
        a("s_barrier")
        if j == 0:
            a.c("workgroup 0: the ready words are cleared")
            lab = a.label("Lsig")
            a(f"s_or_b32 s{sA}, s2, s{sW}")
            a(f"s_cbranch_scc1 {lab}")
            a(f"v_mov_b32 v{U}, 1")
            a("s_mov_b64 exec, 1")
            a(f"buffer_store_dword v{U}, off, {srd(sDBG)}, 0 sc1")
            a("s_mov_b64 exec, -1")
            a(f"{lab}:")
        if j == RDYJ:
            assert "dbg" not in a.vmq
            a.c("wave 1: everything this workgroup had to initialise has landed -> ready word")
            lab, lp, go = a.label("Lrdy"), a.label("Lrdyp"), a.label("Lrdyg")
            a(f"s_cmp_lg_u32 s{sW}, 1")
            a(f"s_cbranch_scc1 {lab}")
            a(f"{lp}:")
            a(f"v_cmp_eq_u32 vcc, 0, v{U + 2}")
            a(f"s_cbranch_vccz {go}")
            budget_check()
            a(f"buffer_load_dword v{U + 2}, off, {srd(sDBG)}, 0 sc1")
            a("s_waitcnt vmcnt(0)")
            a(f"s_branch {lp}")
            a(f"{go}:")
            a(f"s_or_b32 s{sA}, s{sXCC}, 0x80")
            a(f"v_mov_b32 v{U}, s{sA}")
            a(f"s_lshl_b32 s{sA}, s2, 7")
            a(f"s_add_u32 s{sA}, s{sA}, {hex(WS_RDY)}")
            a("s_mov_b64 exec, 1")
            a(f"buffer_store_dword v{U}, off, {srd(sWS)}, s{sA} sc1")
            a("s_mov_b64 exec, -1")
            a(f"{lab}:")
        if j == RDYJ + 1:
            a.vm(f"buffer_load_dword v{T + 18}, v{vRdy}, {srd(sWS)}, 0 offen sc1", "rdy")
        if j == 2:
            for jj in range(4):
                for grp in w_dma(sWA, "q", jj):
                    bgv.add(lambda grp=grp: emit_dma(grp, "wq"))
        if j < 3:
            gemm_kv(0, range(8 * j, 8 * j + 8))
            bgv.flush()
        else:
            gemm_kv(0, range(24, 28))
            x_read(7)
            stamp("x7")
            x_stats(7)
            a(f"v_add_f32 v{ST}, v{ST}, v{ST + 1}")
            a(f"v_add_f32 v{ST + 2}, v{ST + 2}, v{ST + 3}")
            a(f"v_permlane32_swap_b32 v{ST}, v{ST + 2}")
        stamp(f"g{j}")


def ready_check():
    a.wait(vm="rdy")
    lab, ok = a.label("Lh"), a.label("Lhok")
    a(f"{lab}:")
    a(f"v_cmp_gt_u32 vcc, 0x80, v{T + 18}")
    a(f"s_cbranch_vccz {ok}")
    budget_check()
    a(f"buffer_load_dword v{T + 18}, v{vRdy}, {srd(sWS)}, 0 offen sc1")
    a("s_waitcnt vmcnt(0)")
    a(f"s_branch {lab}")
    a(f"{ok}:")
    a(f"s_or_b32 s{sA}, s{sXCC}, 0x80")
    a(f"v_cmp_ne_u32 vcc, s{sA}, v{T + 18}")
    a(f"s_and_b32 s{sA}, vcc_hi, 0xffff")
    a(f"s_cselect_b32 s{sFAST}, 0, 1")
    if "--slow" in sys.argv:
        a(f"s_mov_b32 s{sFAST}, 0")


def x_load(ks):
    if ks % 4 == 0:
        a(f"s_add_u32 s{sXO}, s{sXin}, {ks * 1024}")
    a.vm(f"buffer_load_dwordx4 {vr(XF + ks * 4, 4)}, v{vL16}, {srd(sOUT)}, s{sXO} offen offset:{(ks % 4) * 1024} sc1", f"x{ks}")


def kv_seq(steps, lag):
    seq = []
    kq, vq = list(steps), list(steps)
    while kq or vq:
        if kq:
            seq.append(("k", kq.pop(0)))
        if vq and (len(vq) - len(kq) > lag or not kq):
            seq.append(("v", vq.pop(0)))
    return seq


def gemm_kv(layer, steps):
    steps = list(steps)
    last = steps[-1] == 31
    from_vm = layer > 0
    st = layer & 1
    seq = kv_seq(steps, 2 if last else 0)
    n = len(seq)
    extra = {}

    def at(pos, fn):
        extra.setdefault(pos, []).append(fn)

    def spread(pos, ops, per):
        for i in range(0, len(ops), per):
            at(pos + i // per, lambda i=i: [a(t) for t in ops[i:i + per]])

    def phi_rd():
        for h in range(2):
            a.ds(f"ds_read_b128 {vr(WPH + 4 * h, 4)}, v{vOrd} offset:{L_WPHI - L_R + (st * 2 + h) * 1024}", "wph")
    aug_k = f"{MF8} {vr(ACC0, 16)}, {vr(CSK, 2)}, {vr(MEANB, 2)}, {vr(ACC0, 16)}"
    aug_v = f"{MF8} {vr(ACC1, 16)}, {vr(CSV, 2)}, {vr(MEANB, 2)}, {vr(ACC1, 16)}"
    if layer == 0 and steps[0] == 24:
        at(0, lambda: cs_frag_read("k", st, CSK, "csk"))
        at(0, lambda: cs_frag_read("v", st, CSV, "csv"))
        at(3, lambda: a.wait(lg="csv"))
        spread(3, cs_frag_ops(CSK) + cs_frag_ops(CSV), 3)
    if layer == 0 and last:
        spread(0, stats_ops()[2:], 5)
        at(3, lambda: a(aug_k))
        at(4, lambda: a(aug_v))
        at(5, phi_rd)
        at(6, ready_check)
    if from_vm:
        p0 = n - 26
        at(p0, lambda: cs_frag_read("k", st, CSK, "csk"))
        at(p0 + 1, lambda: cs_frag_read("v", st, CSV, "csv"))
        at(p0 + 4, lambda: a.wait(lg="csv"))
        spread(p0 + 4, cs_frag_ops(CSK) + cs_frag_ops(CSV), 3)
        p1 = n - 16

        def chk():
            a.wait(vm="st")
            stats_check(layer)
        at(p1, chk)
        spread(p1 + 1, stats_ops(), 3)
        at(n - 8, lambda: a(aug_k))
        at(n - 7, lambda: a(aug_v))
        at(n - 5, phi_rd)
    PF = 6
    if not gemm_kv.preissued:
        for i in range(PF):
            w_read(seq[i][0], seq[i][1], RING + (i % 8) * 4, f"w{i}")
    gemm_kv.preissued = False
    for i, (seg, ks) in enumerate(seq):
        a.wait(vm=(f"x{ks}" if from_vm and seg == "k" else None), lg=f"w{i}")
        acc = ACC0 if seg == "k" else ACC1
        a(f"{MF32} {vr(acc, 16)}, {vr(RING + (i % 8) * 4, 4)}, {vr(XF + ks * 4, 4)}, {'0' if ks == 0 else vr(acc, 16)}")
        if i + PF < n:
            w_read(seq[i + PF][0], seq[i + PF][1], RING + ((i + PF) % 8) * 4, f"w{i + PF}")
        if seg == "k":
            if from_vm and ks + NX < 32:
                x_load(ks + NX)
                if ks + NX == 19:
                    stats_loads(layer)
            else:
                bgv.slot()
        for fn in extra.get(i, []):
            fn()


gemm_kv.preissued = False


def kv_preissue():
    seq = kv_seq(range(32), 2)
    for i in range(6):
        w_read(seq[i][0], seq[i][1], RING + (i % 8) * 4, f"w{i}")
    gemm_kv.preissued = True


def feature_map(acc):
    for i in range(8):
        a(f"v_cvt_pk_bf16_f32 v{acc + i}, v{acc + 2 * i}, v{acc + 2 * i + 1}")
    a.wait(lg="wph")
    a(f"{MF32} {vr(P0, 16)}, {vr(WPH, 4)}, {vr(acc, 4)}, 0")
    a(f"{MF32} {vr(P1, 16)}, {vr(WPH + 4, 4)}, {vr(acc + 4, 4)}, 0")


PARK = {(0, "k"): 0, (0, "v"): 8, (0, "q"): 16, (1, "k"): 24, (1, "v"): 0, (1, "q"): 8}
vOwn, vOwnq = ACC1 + 14, ACC1 + 15


def park_addr(d0, d1):
    a(f"v_add_u32 v{d0}, s{sWlds}, v{vL16}")
    a(f"v_add_u32 v{d1}, {hex(L_WQ)}, v{d0}")


def park_op(kind, st, seg, n, base):
    off = (SEG_LDS[seg] & 0xffff) + (n >> 1) * 8192 + (n & 1) * 1024
    reg = ar(128 + (PARK[(st, seg)] + n) * 4, 4)
    if kind == "rd":
        a.ds(f"ds_read_b128 {reg}, v{base} offset:{off}", "park")
    else:
        a.ds(f"ds_write_b128 v{base}, {reg} offset:{off}", "park")


def layer_body(layer):
    st = layer & 1
    more = layer < NLAYERS - 1
    a.c(f"================ layer {layer}")

    def wo_load(n):
        if "--nowot" in sys.argv:
            return
        if n % 4 == 0:
            a(f"s_add_u32 s{sBO}, s{sWOT}, {st * 0x80000 + n * 1024}")
        a.vm(f"buffer_load_dwordx4 {ar(n * 4, 4)}, v{vL16}, {srd(sWS)}, s{sBO} offen offset:{(n % 4) * 1024} sc1", "wot")
    early = WO_EARLY if layer < 2 else 32
    if layer == 0:
        gemm_kv(0, range(28, 32))
        bgv.skip = opt("wodelay", 4)
    else:
        kv_preissue()
        poll_flag(vFl3, layer)
        stamp("f3")
        for ks in range(NX):
            x_load(ks)
        if layer == 1:
            for jj in range(4):
                for grp in w_dma(sWB, "q", jj):
                    bgv.add(lambda grp=grp: emit_dma(grp, "wq"), 2)
    for n in range(early):
        bgv.add(lambda n=n: wo_load(n))
    if layer > 0:
        gemm_kv(layer, range(32))
    stamp("gkv")
    feature_map(ACC0)
    paced([f"v_pk_mul_f32 {vr(ACC1 + 2 * i, 2)}, {vr(ACC1 + 2 * i, 2)}, {vr(RSTD, 2)} op_sel_hi:[1,0]" for i in range(8)])
    paced([f"v_cvt_pk_bf16_f32 v{ACC1 + i}, v{ACC1 + 2 * i}, v{ACC1 + 2 * i + 1}" for i in range(8)])
    a.ds(f"ds_write_b128 v{vVw}, {vr(ACC1, 4)}")
    a.ds(f"ds_write_b128 v{vVw}, {vr(ACC1 + 4, 4)} offset:4096")
    for h, P in enumerate((P0, P1)):
        paced(softmax(P))
        a.ds(f"ds_write_b128 v{vPKw0}, {vr(P, 4)} offset:{h * 8192}")
        a.ds(f"ds_write_b128 v{vPKw1}, {vr(P + 4, 4)} offset:{h * 8192}")
    ONES = ACC1 + 8
    for i in range(4):
        a(f"v_mov_b32 v{ONES + i}, 0x3f803f80")
    bgv.slot()
    assert all(w == 1 for w, _ in bgv.q)
    a.wait(vm=("wq" if layer < 2 else None), lg=0)
    a("s_barrier")
    stamp("pk")
    for m in range(4):
        for t in range(2):
            a.ds(f"ds_read_b64_tr_b16 {vr(RING + m * 8 + t * 2, 2)}, v{vPKr} offset:{m * 1024 + t * 512}", f"m{m}")
        for t in range(2):
            a.ds(f"ds_read_b64_tr_b16 {vr(RING + m * 8 + 4 + t * 2, 2)}, v{vVr} offset:{m * 1024 + t * 512}", f"m{m}")
    bgv.slot()
    DKV, DZ = ACC1, ACC1 + 4
    for m in range(4):
        a.wait(lg=f"m{m}")
        a(f"{MF16} {vr(DKV, 4)}, {vr(RING + m * 8, 4)}, {vr(RING + m * 8 + 4, 4)}, {'0' if m == 0 else vr(DKV, 4)}")
        a(f"{MF16} {vr(DZ, 4)}, {vr(RING + m * 8, 4)}, {vr(ONES, 4)}, {'0' if m == 0 else vr(DZ, 4)}")
    a(f"s_add_u32 s{sA}, s{sKVp}, {layer * KV_L}")
    a(f"s_mov_b32 s{sEX}, 0x00010001")
    a(f"s_mov_b32 s{sEX + 1}, 0x00010001")
    if more:
        park_addr(vOwn, vOwnq)
    a(f"v_cvt_pk_bf16_f32 v{DKV}, v{DKV}, v{DKV + 1}")
    a(f"v_cvt_pk_bf16_f32 v{DKV + 1}, v{DKV + 2}, v{DKV + 3}")
    a.vm(f"buffer_store_dwordx2 {vr(DKV, 2)}, v{vKVst}, {srd(sWS)}, s{sA} offen sc1")
    a(f"v_cvt_pk_bf16_f32 v{DZ}, v{DZ}, v{DZ + 1}")
    a(f"v_cvt_pk_bf16_f32 v{DZ + 1}, v{DZ + 2}, v{DZ + 3}")
    a(f"s_mov_b64 exec, s[{sEX}:{sEX + 1}]")
    a.vm(f"buffer_store_dwordx2 {vr(DZ, 2)}, v{vZst}, {srd(sWS)}, s{sA} offen sc1")
    a("s_mov_b64 exec, -1")
    stamp("pub")
    if layer < 2:
        for i in range(6):
            a(f"v_mov_b32 v{ACC1 + 8 + i}, v{T + 12 + i}")
        bgv.slot()
        colsum_setup()
        bgv.slot()
        colsum([("q", j) for j in range(4)])
        bgv.slot()
        colsum_write("q", st)
        for i in range(6):
            a(f"v_mov_b32 v{T + 12 + i}, v{ACC1 + 8 + i}")
        bgv.slot()
        a.wait(lg=0)
        a("s_barrier")
    for seg in "kvq":
        base = vOwnq if seg == "q" else vOwn
        if layer < 2:
            for n in range(8):
                bgl.add(lambda seg=seg, n=n, base=base: park_op("rd", st, seg, n, base))
        if layer in (1, 2) and seg != "q":
            for n in range(8):
                bgl.add(lambda seg=seg, n=n, base=base: park_op("wr", 1 - st, seg, n, base))
    PART = XF

    def part_load(n, track):
        i, j = divmod(n, 3)
        if j == 0:
            a(f"s_add_u32 s{sXO}, s{sKVc}, {layer * KV_L + i * 4 * KV_R}")
        va, off = ((vKVld, 0), (vKVld, 256), (vZld, 0))[j]
        t = f"buffer_load_dwordx4 {vr(PART + n * 4, 4)}, v{va}, {srd(sWS)}, s{sXO} offen offset:{off} sc1"
        if track:
            a.vm(t, "part")
        else:
            a(t)
    extra = {}

    def at(pos, fn):
        extra.setdefault(pos, []).append(fn)
    CSQ = T + 8
    at(4, lambda: cs_frag_read("q", st, CSQ, "csq"))
    at(8, lambda: a.wait(lg="csq"))
    ops = cs_frag_ops(CSQ)
    for i in range(0, len(ops), 3):
        at(8 + i // 3, lambda i=i: [a(t) for t in ops[i:i + 3]])
    at(13, lambda: a(f"{MF8} {vr(ACC0, 16)}, {vr(CSQ, 2)}, {vr(MEANB, 2)}, {vr(ACC0, 16)}"))
    ppos = PARTPOS - (5 if layer < 2 else 0)
    for ks in range(0, ppos, 2):
        at(ks, bgv.slot)
    at(ppos - 1, bgv.flush)
    for n in range(12):
        at(ppos + n, lambda n=n: part_load(n, True))
    for ks in range(1, 32, 2):
        at(ks, bgl.slot)
    PF = 6
    for i in range(PF):
        w_read("q", i, RING + (i % 8) * 4, f"q{i}")
    for ks in range(32):
        a.wait(lg=f"q{ks}")
        a(f"{MF32} {vr(ACC0, 16)}, {vr(RING + (ks % 8) * 4, 4)}, {vr(XF + ks * 4, 4)}, {'0' if ks == 0 else vr(ACC0, 16)}")
        if ks + PF < 32:
            w_read("q", ks + PF, RING + ((ks + PF) % 8) * 4, f"q{ks + PF}")
        for fn in extra.get(ks, []):
            fn()
    IDN = XF + 64
    a.ds(f"ds_read_b128 {vr(IDN, 4)}, v{vOrd} offset:{L_ID - L_R}", "id")
    a.ds(f"ds_read_b128 {vr(IDN + 4, 4)}, v{vOrd} offset:{L_ID - L_R + 1024}", "id")
    for n in range(early, 32):
        bgv.add(lambda n=n: wo_load(n))
    for i in range(4):
        bgl.slot()
    feature_map(ACC0)
    for i in range(4):
        bgl.slot()
    paced(softmax(P0), pl=32)
    paced(softmax(P1), pl=32)
    bgv.flush()
    bgl.flush()
    stamp("q")
    a.wait(vm="part", lg="id")
    again, ok = a.label("Lpart"), a.label("Lpartok")
    a(f"{again}:")
    for i in range(4):
        a(f"{MF16} {vr(DKV, 4)}, {vr(IDN, 4)}, {vr(PART + (i * 3) * 4, 4)}, {'0' if i == 0 else vr(DKV, 4)}")
        a(f"{MF16} {vr(DKV, 4)}, {vr(IDN + 4, 4)}, {vr(PART + (i * 3 + 1) * 4, 4)}, {vr(DKV, 4)}")
        a(f"{MF16} {vr(DZ, 4)}, {vr(IDN, 4)}, {vr(PART + (i * 3 + 2) * 4, 4)}, {'0' if i == 0 else vr(DZ, 4)}")
    a(f"s_mov_b32 s{sEX}, 0x00030003")
    a(f"s_mov_b32 s{sEX + 1}, 0")
    a(f"v_cmp_u_f32 vcc, v{DKV}, v{DZ}")
    a(f"s_cbranch_vccz {ok}")
    a.c("a NaN: either a slot that still holds the fill pattern (reload) or a NaN in the data (go on)")
    a(f"v_max3_u32 v{T}, v{PART}, v{PART + 1}, v{PART + 2}")
    for i in range(3, 47, 2):
        a(f"v_max3_u32 v{T}, v{T}, v{PART + i}, v{PART + i + 1}")
    a(f"v_max_u32 v{T}, v{T}, v{PART + 47}")
    a(f"v_cmp_eq_u32 vcc, -1, v{T}")
    a(f"s_cbranch_vccz {ok}")
    budget_check()
    for n in range(12):
        part_load(n, False)
    a("s_waitcnt vmcnt(0)")
    a(f"s_branch {again}")
    a(f"{ok}:")
    stamp("part")
    a(f"v_cvt_pk_bf16_f32 v{DKV}, v{DKV}, v{DKV + 1}")
    a(f"v_cvt_pk_bf16_f32 v{DKV + 1}, v{DKV + 2}, v{DKV + 3}")
    a(f"v_cvt_pk_bf16_f32 v{DZ}, v{DZ}, v{DZ + 1}")
    a(f"v_cvt_pk_bf16_f32 v{DZ + 1}, v{DZ + 2}, v{DZ + 3}")
    a.ds(f"ds_write_b64 v{vKVw}, {vr(DKV, 2)}")
    a(f"s_mov_b64 exec, s[{sEX}:{sEX + 1}]")
    a.ds(f"ds_write_b64 v{vZw}, {vr(DZ, 2)}")
    a("s_mov_b64 exec, -1")
    a.wait(lg=0)
    a("s_barrier")
    KVF = XF
    for h in range(2):
        for i in range(2):
            a.ds(f"ds_read_b128 {vr(KVF + (h * 2 + i) * 4, 4)}, v{vKVr} offset:{h * KVH + i * 16}", f"kv{h}")
    for h, (P, acc) in enumerate(((P0, ACC0), (P1, ACC1))):
        a.wait(lg=f"kv{h}")
        a(f"{MF32} {vr(acc, 16)}, {vr(KVF + h * 8, 4)}, {vr(P, 4)}, 0")
        a(f"{MF32} {vr(acc, 16)}, {vr(KVF + h * 8 + 4, 4)}, {vr(P + 4, 4)}, {vr(acc, 16)}")
    a(f"v_mov_b32 v{T + 2}, {layer + 1}")
    if more:
        park_addr(T + 10, T + 11)
    for acc in (ACC0, ACC1):
        a(f"v_add_f32 v{acc + 8}, 0x358637bd, v{acc + 8}")
        a(f"v_rcp_f32 v{acc + 8}, v{acc + 8}")
        for i in range(4):
            x = vr(acc + 2 * i, 2)
            a(f"v_pk_mul_f32 {x}, {x}, {vr(acc + 8, 2)} op_sel_hi:[1,0]")
        for i in range(4):
            a(f"v_cvt_pk_bf16_f32 v{acc + i}, v{acc + 2 * i}, v{acc + 2 * i + 1}")
    dual_store([
        f"buffer_store_dwordx4 {vr(ACC0, 4)}, v{vL16}, {srd(sWS)}, s{sOst} offen",
        f"buffer_store_dwordx4 {vr(ACC1, 4)}, v{vL16}, {srd(sWS)}, s{sOst} offen offset:1024",
        "s_mov_b64 exec, 1",
        "s_waitcnt vmcnt(0)",
        f"buffer_store_dword v{T + 2}, off, {srd(sWS)}, s{sF2p}",
        "s_mov_b64 exec, -1",
    ])
    a.vmq = []
    stamp("o")
    if layer in (1, 2):
        for n in range(8):
            park_op("wr", 1 - st, "q", n, T + 11)
    poll_flag(vFl2, layer + 1)
    stamp("f2")
    a(f"s_lshl_b32 s{sB}, s{sW}, 13")
    for j in range(8):
        if j % 4 == 0:
            a(f"s_add_u32 m0, s{sB}, {L_R + j * 1024}")
            a(f"s_add_u32 s{sA}, s{sOld}, {j * 1024}")
        a.vm(f"buffer_load_dwordx4 v{vL16}, {srd(sWS)}, s{sA} offen offset:{(j % 4) * 1024} sc1 lds", "o")
    a.wait(vm=0)
    a("s_barrier")
    stamp("old")
    if layer == 0 and "--nowdma" not in sys.argv:
        for jj in range(4):
            for seg in "kv":
                for grp in w_dma(sWB, seg, jj):
                    bgv.add(lambda grp=grp: emit_dma(grp, "wn"))
    PF = 7
    for i in range(PF):
        a.ds(f"ds_read_b128 {vr(RING + (i % 8) * 4, 4)}, v{vOrd} offset:{i * 1024}", f"o{i}")
    for ks in range(32):
        a.wait(lg=f"o{ks}")
        a(f"{MF32} {vr(RES, 16)}, {ar(ks * 4, 4)}, {vr(RING + (ks % 8) * 4, 4)}, {vr(RES, 16)}")
        if ks + PF < 32:
            a.ds(f"ds_read_b128 {vr(RING + ((ks + PF) % 8) * 4, 4)}, v{vOrd} offset:{(ks + PF) * 1024}", f"o{ks + PF}")
        if ks % 2 == 0:
            bgv.slot()
    bgv.flush()
    if not more:
        a(f"v_and_b32 v{T}, 31, v{vTID}")
        a(f"v_lshrrev_b32 v{T + 1}, 5, v{vTID}")
        a(f"v_lshlrev_b32 v{T + 1}, 4, v{T + 1}")
        a(f"v_lshl_add_u32 v{T}, v{T}, 10, v{T + 1}")
    else:
        a(f"v_mov_b32 v{T + 6}, {layer + 1}")
    for i in range(8):
        a(f"v_cvt_pk_bf16_f32 v{ACC0 + i}, v{RES + 2 * i}, v{RES + 2 * i + 1}")
    if not more:
        a.vm(f"buffer_store_dwordx4 {vr(ACC0, 4)}, v{T}, {srd(sOUT)}, s{sF} offen")
        a.vm(f"buffer_store_dwordx4 {vr(ACC0 + 4, 4)}, v{T}, {srd(sOUT)}, s{sF} offen offset:32")
        stamp("end")
        return
    dual_store([
        f"buffer_store_dwordx4 {vr(ACC0, 4)}, v{vL16}, {srd(sOUT)}, s{sXst} offen",
        f"buffer_store_dwordx4 {vr(ACC0 + 4, 4)}, v{vL16}, {srd(sOUT)}, s{sXst} offen offset:1024",
    ])
    stats_partial()
    dual_store([
        "s_mov_b64 exec, 1",
        "s_waitcnt vmcnt(0)",
        f"buffer_store_dword v{T + 6}, off, {srd(sWS)}, s{sF3p}",
        "s_mov_b64 exec, -1",
    ])
    a.vmq = []
    stamp("x")
    if layer == 0:
        colsum_setup()
        colsum([(s, j) for s in "kv" for j in range(4)])
        colsum_write("kv", 1)
    a.wait(lg=0)
    a("s_barrier")
    stats_publish(layer + 1, False)


def main():
    prologue()
    for layer in range(NLAYERS):
        layer_body(layer)
    if STAMP:
        a(f"s_lshl_b32 s{sA}, s2, 2")
        a(f"s_add_u32 s{sA}, s{sA}, s{sW}")
        a(f"s_lshl_b32 s{sA}, s{sA}, 8")
        a(f"s_add_u32 s{sA}, s{sA}, {hex(WS_STAMP)}")
        a(f"buffer_store_dword v{vSTAMP}, v{vL4}, {srd(sWS)}, s{sA} offen")
    if "--spin" in sys.argv:
        a("L_spin:")
        a("s_memrealtime s[90:91]")
        a("s_waitcnt lgkmcnt(0)")
        a("s_sub_u32 s90, s90, s98")
        a("s_cmp_lt_u32 s90, 10000")
        a("s_cbranch_scc1 L_spin")
    a("L_end:")
    a("s_endpgm")
    n = a.fix_hazards(verbose="-v" in sys.argv)
    head = open("cdna_kernels/" + NAME + ".s.ref").read().split("; Override launch")[0]
    txt = head
    txt += "; Persistent kernel: 256 workgroups (one per CU), generated by the author's script.\n"
    txt += f"; @launch grid=(256,1,1) block=(256,1,1) lds={L_END}\n"
    txt += f""".amdgcn_target "amdgcn-amd-amdhsa--gfx950"
.text
.globl {NAME}_kernel
.p2align 8
.type {NAME}_kernel,@function
{NAME}_kernel:
"""
    txt += a.text()
    txt += f""".section .rodata,"a"
.p2align 6
.amdhsa_kernel {NAME}_kernel
  .amdhsa_next_free_vgpr 512
  .amdhsa_next_free_sgpr 100
  .amdhsa_accum_offset 256
  .amdhsa_group_segment_fixed_size 0
  .amdhsa_kernarg_size 88
  .amdhsa_user_sgpr_count 2
  .amdhsa_user_sgpr_kernarg_segment_ptr 1
  .amdhsa_system_sgpr_workgroup_id_x 1
  .amdhsa_float_denorm_mode_32 3
.end_amdhsa_kernel
"""
    outp = [x for x in sys.argv[1:] if x.endswith(".s")]
    outp = outp[0] if outp else "cdna_kernels/" + NAME + ".s"
    open(outp, "w").write(txt)
    if STAMP:
        open(outp + ".stamps", "w").write("\n".join(stamp_names))
    print("wrote", outp, "nop states inserted:", n, "instrs:", sum(1 for i in a.out if i.mn), file=sys.stderr)


main()
```
